```python
import torch

def _softmax(x, axis=-1):
    return torch.softmax(x, dim=axis)
def _gelu(x):
    return torch.nn.functional.gelu(x, approximate="tanh")
def _silu(x):
    return torch.nn.functional.silu(x)
def _sigmoid(x):
    return torch.sigmoid(x)
def _layernorm(x, axis=-1, eps=1e-5):
    m = x.mean(dim=axis, keepdim=True)
    v = x.var(dim=axis, keepdim=True, unbiased=False)
    return (x - m) / torch.sqrt(v + eps)
def _scatter_add(tgt, idx, src, axis=0):
    return tgt.clone().index_add_(axis, idx, src)
def _segment_sum(src, seg, n):
    out = torch.zeros((n,) + src.shape[1:], dtype=src.dtype)
    return out.index_add_(0, seg, src)
def _pad(x, pw):
    flat = tuple(v for pair in reversed(pw) for v in pair)
    return torch.nn.functional.pad(x, flat)

kernel_name = 'parallel_sum__linear_attn_block__mixer_token_mlp__prompt'

def setup_inputs():

    _w = (lambda a: (lambda t: t.to(torch.bfloat16) if t.is_floating_point() else t)(torch.as_tensor(a)))
    def _A_setup():
        B, S, D = 1, 2048, 512
        return {
            "x": _w((lambda *s: torch.randn(*s, dtype=torch.bfloat16) * 0.05)(B, S, D)),
            "wqkv": _w((lambda *s: torch.randn(*s, dtype=torch.bfloat16) * 0.05)(D, 3 * D)),
            "wo": _w((lambda *s: torch.randn(*s, dtype=torch.bfloat16) * 0.05)(D, D)),
        }
    _A_in = _A_setup()

    def _B_setup():
        B, S, D, F = 1, 2048, 512, 1376
        return {
            "x": _w((lambda *s: torch.randn(*s, dtype=torch.bfloat16) * 0.05)(B, S, D)),
            "w1": _w((lambda *s: torch.randn(*s, dtype=torch.bfloat16) * 0.4)(S, F) * (S ** -0.5)),
            "b1": _w((lambda *s: torch.randn(*s, dtype=torch.bfloat16) * 3.2)(F) * 0.02),
            "w2": _w((lambda *s: torch.randn(*s, dtype=torch.bfloat16) * 0.2)(F, S) * (F ** -0.5)),
            "b2": _w((lambda *s: torch.randn(*s, dtype=torch.bfloat16) * 0.8)(S) * 0.02),
        }
    _B_in = _B_setup()

    return {
        "A_x": _A_in["x"],
        "A_wqkv": _A_in["wqkv"],
        "A_wo": _A_in["wo"],
        "B_x": _B_in["x"],
        "B_w1": _B_in["w1"],
        "B_b1": _B_in["b1"],
        "B_w2": _B_in["w2"],
        "B_b2": _B_in["b2"],
    }

def reference(A_x, A_wqkv, A_wo, B_x, B_w1, B_b1, B_w2, B_b2):
    def _A_ref(x, wqkv, wo):
        B, S, D = x.shape
        H = 32; Dh = D // H
        qkv = (lambda x, *d: x.permute(*d))((x @ wqkv).reshape(B, S, 3, H, Dh), 2, 0, 3, 1, 4)
        q, k, v = qkv[0], qkv[1], qkv[2]
        phi = lambda t: torch.where(t > 0, t + 1, torch.exp(t)) + 1e-6
        pq, pk = phi(q), phi(k)
        kv = torch.einsum("bhsd,bhse->bhde", pk, v)
        z = torch.einsum("bhsd->bhd", pk)
        num = torch.einsum("bhqd,bhde->bhqe", pq, kv)
        den = torch.einsum("bhqd,bhd->bhq", pq, z)[..., None] + 1e-6
        o = num / den
        return (lambda x, *d: x.permute(*d))(o, 0, 2, 1, 3).reshape(B, S, D) @ wo

    def _B_ref(x, w1, b1, w2, b2):
        B, S, D = x.shape
        h = _layernorm(x, axis=-1)
        u = torch.einsum("bsd,sf->bdf", h, w1) + b1
        u = _gelu(u)
        y = torch.einsum("bdf,fs->bds", u, w2) + b2
        return (lambda x, *d: x.permute(*d))(y, 0, 2, 1)

    x = A_x
    xn = _layernorm(x, axis=-1)
    return x + _A_ref(xn, A_wqkv, A_wo) + _B_ref(xn, B_w1, B_b1, B_w2, B_b2)
```

```python
import re

TRANS = ('v_exp_f32', 'v_log_f32', 'v_rcp_f32', 'v_rsq_f32', 'v_sqrt_f32', 'v_sin_f32', 'v_cos_f32')
NODST_S = ('s_cmp', 's_cbranch', 's_branch', 's_waitcnt', 's_barrier', 's_nop', 's_sleep', 's_setprio',
           's_endpgm', 's_bitcmp', 's_setreg')


def parse_reg(tok):
    tok = tok.strip()
    tok = tok.lstrip('-')
    if tok.startswith('abs(') and tok.endswith(')'):
        tok = tok[4:-1]
    if tok.startswith('|') and tok.endswith('|'):
        tok = tok[1:-1]
    m = re.fullmatch(r'([vas])(\d+)', tok)
    if m:
        return [(m.group(1), int(m.group(2)))]
    m = re.fullmatch(r'([vas])\[(\d+):(\d+)\]', tok)
    if m:
        return [(m.group(1), i) for i in range(int(m.group(2)), int(m.group(3)) + 1)]
    if tok == 'vcc':
        return [('s', 'vcc_lo'), ('s', 'vcc_hi')]
    if tok in ('vcc_lo', 'vcc_hi', 'm0'):
        return [('s', tok)]
    if tok == 'exec':
        return [('s', 'exec_lo'), ('s', 'exec_hi')]
    return []


class Inst:
    def __init__(self, text):
        self.text = text
        t = text.split(';')[0].strip()
        self.label = None
        self.kind = 'other'
        self.mn = ''
        self.dst = []
        self.src = []
        self.states = 1
        if t.endswith(':'):
            self.label = t[:-1]
            self.kind = 'label'
            self.states = 0
            return
        if not t or t.startswith('.'):
            self.kind = 'dir'
            self.states = 0
            return
        parts = t.split(None, 1)
        mn = parts[0]
        self.mn = mn
        rest = parts[1] if len(parts) > 1 else ''
        ops, depth, cur = [], 0, ''
        for ch in rest:
            if ch in '[(':
                depth += 1
            if ch in '])':
                depth -= 1
            if ch == ',' and depth == 0:
                ops.append(cur.strip())
                cur = ''
            else:
                cur += ch
        if cur.strip():
            ops.append(cur.strip())
        mods = ''
        if ops:
            last = ops[-1].split(None, 1)
            ops[-1] = last[0]
            mods = last[1] if len(last) > 1 else ''
        self.ops = ops
        self.mods = mods
        R = [parse_reg(o) for o in ops]
        flat = lambda L: [x for l in L for x in l]
        base = re.sub(r'_(e32|e64|dpp|sdwa)$', '', mn)
        self.base = base
        if mn.startswith('v_mfma'):
            self.kind = 'mfma'
            self.dst = R[0]
            self.A, self.B, self.C = R[1], R[2], R[3]
            self.src = R[1] + R[2] + R[3]
            self.passes = 8 if '32x32' in mn else 4
        elif mn.startswith('v_'):
            self.kind = 'valu'
            self.trans = base in TRANS
            self.dpp = ('row_' in mods) or ('quad_perm' in mods) or mn.endswith('_dpp')
            self.perm = base.startswith('v_permlane')
            self.rdlane = base in ('v_readlane_b32', 'v_readfirstlane_b32')
            if base == 'v_nop':
                pass
            elif self.perm:
                self.dst = R[0] + R[1]
                self.src = R[0] + R[1]
            else:
                self.dst = R[0]
                self.src = flat(R[1:])
                if base in ('v_fmac_f32', 'v_dot2c_f32_bf16', 'v_writelane_b32') or self.dpp:
                    self.src += R[0]
                if base.startswith('v_add_co') or base.startswith('v_addc_co') or base.startswith('v_sub_co'):
                    self.dst = R[0] + R[1]
                    self.src = flat(R[2:])
        elif mn.startswith('ds_'):
            self.kind = 'ds'
            if mn.startswith('ds_read') or mn.startswith('ds_bpermute') or mn.startswith('ds_swizzle'):
                self.dst = R[0]
                self.src = flat(R[1:])
            else:
                self.src = flat(R)
        elif mn.startswith('buffer_') or mn.startswith('global_'):
            self.kind = 'vmem'
            self.lds = (' lds' in ' ' + mods) or ('_lds_' in mn)
            self.wide_store = None
            if mn in ('buffer_inv', 'buffer_wbl2'):
                pass
            elif self.lds:
                self.src = flat(R) + [('s', 'm0')]
            elif '_load' in mn:
                self.dst = R[0]
                self.src = flat(R[1:])
            elif '_atomic' in mn:
                ret = 'sc0' in mods.split()
                if mn.startswith('buffer_'):
                    self.src = flat(R)
                    if ret:
                        self.dst = R[0]
                else:
                    if ret:
                        self.dst = R[0]
                        self.src = flat(R[1:])
                    else:
                        self.src = flat(R)
            else:
                self.src = flat(R)
                data = R[0] if mn.startswith('buffer_') else R[1]
                if mn.endswith('x4') or mn.endswith('x3'):
                    self.wide_store = data
        elif mn.startswith('s_'):
            self.kind = 'salu'
            if mn == 's_nop':
                self.states = int(ops[0], 0) + 1
            if mn.startswith('s_load') or mn.startswith('s_memtime') or mn.startswith('s_memrealtime'):
                self.kind = 'smem'
            if not mn.startswith(NODST_S):
                self.dst = R[0]
                self.src = flat(R[1:])
                if 'saveexec' in mn:
                    self.dst = R[0] + parse_reg('exec')
            else:
                self.src = flat(R)
            self.target = ops[0] if (mn.startswith('s_cbranch') or mn == 's_branch') else None


def required(prod, cons):
    need = 0
    pd = set(prod.dst)
    cs = set(cons.src)
    cd = set(cons.dst)
    if prod.kind == 'valu':
        vd = {r for r in pd if r[0] in 'va'}
        sd = {r for r in pd if r[0] == 's'}
        if cons.kind == 'mfma' and vd & cs:
            need = max(need, 2)
        if cons.kind == 'valu':
            if vd & cs:
                if cons.rdlane:
                    need = max(need, 1)
                if cons.dpp or cons.perm:
                    need = max(need, 2)
                if prod.trans and not cons.trans:
                    need = max(need, 1)
            if sd & cs:
                need = max(need, 4 if (cons.rdlane or cons.base == 'v_writelane_b32') else 2)
        if cons.kind == 'vmem' and sd & cs:
            need = max(need, 5)
        if cons.kind in ('vmem', 'ds') and prod.trans and vd & cs:
            need = max(need, 1)
    if prod.kind == 'mfma':
        p8 = prod.passes == 8
        if cons.kind == 'mfma':
            if pd & (set(cons.A) | set(cons.B)):
                need = max(need, 12 if p8 else 8)
            if pd & set(cons.C):
                if not (cons.C == prod.dst and cons.passes == prod.passes):
                    need = max(need, 10 if p8 else 6)
            elif pd & cd:
                need = max(need, 12 if p8 else 8)
        elif cons.kind in ('valu', 'vmem', 'ds'):
            if pd & (cs | cd):
                need = max(need, 12 if p8 else 8)
            if cons.kind == 'valu' and set(prod.C) & cd:
                need = max(need, 7 if p8 else 3)
    if prod.kind == 'salu':
        if ('s', 'm0') in pd and cons.kind == 'vmem' and cons.lds:
            need = max(need, 1)
    if prod.kind == 'vmem' and prod.wide_store:
        if set(prod.wide_store) & cd:
            need = max(need, 2)
    return need


WINDOW = 20


class Asm:
    def __init__(self):
        self.ins = []
        self.vm_issued = 0
        self.vm_done = 0
        self.lg_issued = 0
        self.lg_done = 0
        self.uid = 0

    def __call__(self, text):
        for line in text.split('\n'):
            if not line.strip():
                continue
            i = Inst(line.strip())
            self.ins.append(i)
            if i.kind == 'vmem' and i.mn not in ('buffer_inv', 'buffer_wbl2'):
                self.vm_issued += 1
            if i.kind == 'ds':
                self.lg_issued += 1
        return self

    def label(self, stem):
        self.uid += 1
        return f"{stem}_{self.uid}"

    def vtok(self):
        return self.vm_issued

    def ltok(self):
        return self.lg_issued

    def wait(self, vm=None, lg=None, force=False):
        s = []
        if vm is not None and (vm > self.vm_done or force):
            n = self.vm_issued - vm
            assert n >= 0
            n = min(n, 63)
            s.append(f"vmcnt({n})")
            self.vm_done = max(self.vm_done, self.vm_issued - n)
        if lg is not None and (lg > self.lg_done or force):
            n = self.lg_issued - lg
            assert n >= 0
            n = min(n, 15)
            s.append(f"lgkmcnt({n})")
            self.lg_done = max(self.lg_done, self.lg_issued - n)
        if s:
            self("s_waitcnt " + " ".join(s))

    def wait_all(self):
        self("s_waitcnt vmcnt(0) lgkmcnt(0)")
        self.vm_done = self.vm_issued
        self.lg_done = self.lg_issued

    def reset_counters(self):
        self.vm_done = self.vm_issued
        self.lg_done = self.lg_issued

    def finish(self):
        ins = self.ins
        labels = {i.label: n for n, i in enumerate(ins) if i.kind == 'label'}
        pad = [0] * len(ins)

        def succ(n):
            i = ins[n]
            out = []
            if i.kind == 'salu' and i.mn == 's_endpgm':
                return out
            if i.kind == 'salu' and i.target is not None:
                if i.target in labels:
                    out.append(labels[i.target])
                if i.mn == 's_branch':
                    return out
            if n + 1 < len(ins):
                out.append(n + 1)
            return out

        changed = True
        it = 0
        while changed:
            changed = False
            it += 1
            assert it < 50
            for n, p in enumerate(ins):
                if p.kind not in ('valu', 'mfma', 'salu', 'vmem') or not (p.dst or getattr(p, 'wide_store', None)):
                    continue
                if p.kind == 'salu' and ('s', 'm0') not in p.dst:
                    continue
                if p.kind == 'vmem' and not p.wide_store:
                    continue
                stack = [(s, 0) for s in succ(n)]
                seen = {}
                while stack:
                    m, d = stack.pop()
                    if m in seen and seen[m] <= d:
                        continue
                    seen[m] = d
                    c = ins[m]
                    d2 = d + pad[m]
                    if c.kind not in ('label', 'dir'):
                        need = required(p, c)
                        if need > d2:
                            pad[m] += need - d2
                            d2 = need
                            changed = True
                    d3 = d2 + c.states
                    if d3 < WINDOW:
                        for s in succ(m):
                            stack.append((s, d3))
        out = []
        self.nops = 0
        for n, i in enumerate(ins):
            k = pad[n]
            self.nops += k
            while k > 0:
                t = min(k, 16)
                out.append(f"  s_nop {t - 1}")
                k -= t
            out.append(i.text if i.kind in ('label', 'dir') else "  " + i.text)
        return "\n".join(out)


def vr(cls, lo, n=1):
    return f"{cls}{lo}" if n == 1 else f"{cls}[{lo}:{lo + n - 1}]"


class Reg:
    def __init__(self, cls, lo, n=1):
        self.cls, self.lo, self.n = cls, lo, n

    def __str__(self):
        return vr(self.cls, self.lo, self.n)

    def __getitem__(self, k):
        if isinstance(k, slice):
            a = k.start or 0
            b = k.stop if k.stop is not None else self.n
            assert 0 <= a < b <= self.n
            return Reg(self.cls, self.lo + a, b - a)
        assert 0 <= k < self.n
        return Reg(self.cls, self.lo + k, 1)

    def __format__(self, spec):
        return str(self)


class Pool:
    def __init__(self, cls, n, reserved=()):
        self.cls = cls
        self.free = [True] * n
        for r in reserved:
            self.free[r] = False
        self.hi = max(reserved) + 1 if reserved else 0

    def alloc(self, n=1, align=None, top=False):
        if align is None:
            align = 1 if n == 1 else (2 if n == 2 else 4)
        rng = range(0, len(self.free) - n + 1, align)
        if top:
            rng = reversed(rng)
        for lo in rng:
            if all(self.free[lo:lo + n]):
                for i in range(lo, lo + n):
                    self.free[i] = False
                self.hi = max(self.hi, lo + n)
                return Reg(self.cls, lo, n)
        raise RuntimeError(f"out of {self.cls} registers for {n}")

    def can(self, n=1, align=None):
        if align is None:
            align = 1 if n == 1 else (2 if n == 2 else 4)
        return any(all(self.free[lo:lo + n]) for lo in range(0, len(self.free) - n + 1, align))

    def release(self, r):
        assert r.cls == self.cls
        for i in range(r.lo, r.lo + r.n):
            assert not self.free[i], f"double free {r}"
            self.free[i] = True

    def nfree(self):
        return sum(self.free)
```

```python
import sys, struct, math
from asmlib import Asm, Pool, Reg

NAME = 'parallel_sum__linear_attn_block__mixer_token_mlp__prompt'

WS_HT = 0x000000
WS_G = 0x200000
G_BYTES = 172 * 8192
WS_PQ = 0x400000
WS_KVZ = 0x600000
WS_STAT = 0x610000
WS_F1 = 0x620000
WS_F2 = 0x630000
WS_TS = 0x700000
WS_SIZE = 0x800000

REGION = 40960
LOG2E = 1.4426950408889634


def f32(x):
    return '0x%08x' % struct.unpack('<I', struct.pack('<f', x))[0]


class Cfg:
    fused = True
    stamps = False
    E = 8
    HN = 13
    code_prefetch = True


class Gen:
    def __init__(self, cfg):
        self.cfg = cfg
        self.a = Asm()
        self.nstamp = 0

    def new_pools(self):
        self.V = Pool('v', 256, reserved=[0, 255] if self.cfg.stamps else [0])
        self.A = Pool('a', 256)

    def srd(self, dst, ptr, size, add=0):
        a = self.a
        if add:
            a(f"s_add_u32 {dst[0]}, {ptr[0]}, {hex(add)}")
            a(f"s_addc_u32 {dst[1]}, {ptr[1]}, 0")
        else:
            a(f"s_mov_b32 {dst[0]}, {ptr[0]}")
            a(f"s_mov_b32 {dst[1]}, {ptr[1]}")
        a(f"s_mov_b32 {dst[2]}, {hex(size)}")
        a(f"s_mov_b32 {dst[3]}, 0x20000")

    def stamp(self):
        if self.cfg.stamps:
            k = self.nstamp
            self.nstamp += 1
            assert k < 32
            self.a("s_memrealtime s[76:77]" if self.cfg.stamps == 1 else "s_memtime s[76:77]")
            self.a("s_waitcnt lgkmcnt(0)")
            self.a(f"v_writelane_b32 v255, s76, {k}")
            self.a.lg_done = self.a.lg_issued

    def flush_stamps(self, kidx=0):
        if not self.cfg.stamps:
            return
        a = self.a
        a("s_waitcnt vmcnt(0) lgkmcnt(0)")
        a(f"s_lshl_b32 s3, s2, 2")
        a(f"s_add_u32 s3, s3, {self.sWave}")
        a(f"s_lshl_b32 s3, s3, 7")
        a(f"s_add_u32 s3, s3, {hex(WS_TS + kidx * 0x20000)}")
        a(f"v_lshlrev_b32 v1, 2, {self.vLane}")
        a("s_mov_b64 exec, 0xffffffff")
        a(f"buffer_store_dword v255, v1, {self.srdWS}, s3 offen")
        a("s_waitcnt vmcnt(0)")

    def prologue(self, endlabel):
        a = self.a
        self.new_pools()
        S = lambda lo, n=1: Reg('s', lo, n)
        self.pX, self.pWqkv, self.pWo, self.pW1 = S(4, 2), S(6, 2), S(8, 2), S(12, 2)
        self.pB1, self.pW2, self.pB2 = S(14, 2), S(16, 2), S(18, 2)
        self.pOut, self.pDbg, self.pWs = S(20, 2), S(22, 2), S(24, 2)
        self.srdX, self.srdW, self.srdWS, self.srdG = S(28, 4), S(32, 4), S(36, 4), S(40, 4)
        self.srdW2, self.srdWo, self.srdB, self.srdO = S(44, 4), S(48, 4), S(52, 4), S(56, 4)
        self.sWave, self.sXcd, self.sQ, self.sGrp = S(26), S(27), S(60), S(61)
        self.sNonce = S(62)
        self.sT = [S(63 + i) for i in range(9)]
        self.sP = S(72, 2)
        self.sP2 = S(74, 2)
        a(f"s_cmp_ge_u32 s2, 256")
        a(f"s_cbranch_scc1 {endlabel}")
        a("s_load_dwordx16 s[4:19], s[0:1], 0")
        a("s_load_dwordx4 s[20:23], s[0:1], 64")
        a("s_load_dwordx2 s[24:25], s[0:1], 80")
        self.vLane = self.V.alloc()
        a(f"v_lshrrev_b32 {self.vLane}, 6, v0")
        a(f"s_and_b32 {self.sXcd}, s2, 7")
        a(f"v_readfirstlane_b32 {self.sWave}, {self.vLane}")
        a(f"s_lshr_b32 {self.sQ}, s2, 3")
        a(f"v_and_b32 {self.vLane}, 63, v0")
        a(f"s_lshl_b32 {self.sGrp}, {self.sXcd}, 5")
        a(f"s_add_u32 {self.sGrp}, {self.sGrp}, {self.sQ}")
        a("s_waitcnt lgkmcnt(0)")
        self.srd(self.srdX, self.pX, 2048 * 1024)
        self.srd(self.srdWS, self.pWs, WS_SIZE)

    def ln_load(self):
        a, V = self.a, self.V
        self.vL16 = V.alloc()
        self.lnx = [V.alloc(4), V.alloc(4)]
        t = self.sT[0]
        a(f"v_lshlrev_b32 {self.vL16}, 4, {self.vLane}")
        a(f"s_lshl_b32 {t}, {self.sGrp}, 2")
        a(f"s_add_u32 {t}, {t}, {self.sWave}")
        a(f"s_lshl_b32 {t}, {t}, 11")
        a(f"buffer_load_dwordx4 {self.lnx[0]}, {self.vL16}, {self.srdX}, {t} offen")
        a(f"buffer_load_dwordx4 {self.lnx[1]}, {self.vL16}, {self.srdX}, {t} offen offset:1024")
        self.ln_tok = a.vtok()
        if self.cfg.fused:
            L = a.label('NOTAG')
            a(f"s_or_b32 {t}, s2, {self.sWave}")
            a(f"s_cmp_lg_u32 {t}, 0")
            a(f"s_cbranch_scc1 {L}")
            a(f"s_memrealtime {self.sP}")
            tmp = V.alloc(2)
            a(f"v_mov_b32 {tmp[0]}, 0")
            a("s_waitcnt lgkmcnt(0)")
            a(f"s_or_b32 {self.sP[0]}, {self.sP[0]}, 1")
            a(f"v_mov_b32 {tmp[1]}, {self.sP[0]}")
            n = a.vm_issued
            a(f"global_store_dword {tmp[0]}, {tmp[1]}, {self.pDbg} sc1")
            a.vm_issued = n
            a(f"{L}:")
            V.release(tmp)

    def reduce2(self, x, y):
        a = self.a
        a(f"v_permlane32_swap_b32 {x}, {y}")
        a(f"v_add_f32 {x}, {x}, {y}")
        for sh in (1, 2, 4, 8):
            a(f"v_add_f32_dpp {x}, {x}, {x} row_shr:{sh} row_mask:0xf bank_mask:0xf bound_ctrl:0")
        a(f"v_add_f32_dpp {x}, {x}, {x} row_bcast:15 row_mask:0xa bank_mask:0xf")

    def ln_compute(self, stg_base, stg_stride, stat_lds):
        a, V = self.a, self.V
        c = [V.alloc(8), V.alloc(8)]
        t = [V.alloc(4), V.alloc(4)]
        sMean, sR, sA = self.sP, self.sP2, Reg('s', 70, 2)
        vW, vR, vSt = V.alloc(), V.alloc(), V.alloc()
        tm = self.sT[0]
        a(f"v_lshrrev_b32 {vW}, 4, {self.vLane}")
        a(f"s_mov_b32 {tm}, {stg_stride}")
        a(f"v_mul_lo_u32 {vW}, {vW}, {tm}")
        a(f"v_and_b32 {vR}, 15, {self.vLane}")
        a(f"v_lshl_add_u32 {vW}, {vR}, 4, {vW}")
        a(f"s_mul_i32 {tm}, {self.sWave}, 640")
        a(f"s_add_u32 {tm}, {tm}, {stg_base}")
        a(f"v_add_u32 {vW}, {tm}, {vW}")
        a(f"v_lshrrev_b32 {vR}, 2, {vR}")
        a(f"v_mul_u32_u24 {vR}, 320, {vR}")
        a(f"v_lshrrev_b32 {vSt}, 4, {self.vLane}")
        a(f"v_lshl_add_u32 {vR}, {vSt}, 5, {vR}")
        a(f"v_and_b32 {vSt}, 3, {self.vLane}")
        a(f"v_lshl_add_u32 {vR}, {vSt}, 3, {vR}")
        a(f"s_mul_i32 {tm}, {self.sWave}, {stg_stride}")
        a(f"s_add_u32 {tm}, {tm}, {stg_base}")
        a(f"v_add_u32 {vR}, {tm}, {vR}")
        a(f"s_lshl_b32 {tm}, {self.sWave}, 3")
        a(f"s_add_u32 {tm}, {tm}, {stat_lds}")
        a(f"v_mov_b32 {vSt}, {tm}")
        a.wait(vm=self.ln_tok)
        self.stamp()
        for r in range(2):
            for j in range(4):
                a(f"v_lshlrev_b32 {c[r][2 * j]}, 16, {self.lnx[r][j]}")
                a(f"v_and_b32 {c[r][2 * j + 1]}, 0xffff0000, {self.lnx[r][j]}")
        for r in range(2):
            a(f"v_pk_add_f32 {t[r][0:2]}, {c[r][0:2]}, {c[r][2:4]}")
            a(f"v_pk_add_f32 {t[r][2:4]}, {c[r][4:6]}, {c[r][6:8]}")
        for r in range(2):
            a(f"v_pk_add_f32 {t[r][0:2]}, {t[r][0:2]}, {t[r][2:4]}")
        for r in range(2):
            a(f"v_add_f32 {t[r][0]}, {t[r][0]}, {t[r][1]}")
        self.reduce2(t[0][0], t[1][0])
        a(f"v_mul_f32 {t[0][0]}, {f32(1 / 512)}, {t[0][0]}")
        a(f"v_readlane_b32 {sMean[0]}, {t[0][0]}, 31")
        a(f"v_readlane_b32 {sMean[1]}, {t[0][0]}, 63")
        sel = ["op_sel:[0,0] op_sel_hi:[1,0]", "op_sel:[0,1] op_sel_hi:[1,1]"]
        for r in range(2):
            for j in range(4):
                a(f"v_pk_add_f32 {c[r][2 * j:2 * j + 2]}, {c[r][2 * j:2 * j + 2]}, {sMean} {sel[r]} neg_lo:[0,1] neg_hi:[0,1]")
        for r in range(2):
            a(f"v_pk_mul_f32 {t[r][0:2]}, {c[r][0:2]}, {c[r][0:2]}")
        for j in range(1, 4):
            for r in range(2):
                a(f"v_pk_fma_f32 {t[r][0:2]}, {c[r][2 * j:2 * j + 2]}, {c[r][2 * j:2 * j + 2]}, {t[r][0:2]}")
        for r in range(2):
            a(f"v_add_f32 {t[r][0]}, {t[r][0]}, {t[r][1]}")
        self.reduce2(t[0][0], t[1][0])
        var, r1, u, aa = t[0][0], t[0][1], t[0][2], t[0][3]
        eps = t[1][0]
        a(f"v_mov_b32 {eps}, {f32(1e-5)}")
        a(f"v_mul_f32 {var}, {f32(1 / 512)}, {var}")
        a(f"v_add_f32 {r1}, {var}, {eps}")
        a(f"v_rsq_f32 {r1}, {r1}")
        a(f"v_mul_f32 {u}, {var}, {r1}")
        a(f"v_fma_f32 {u}, {u}, {r1}, {eps}")
        a(f"v_rsq_f32 {u}, {u}")
        a(f"v_mul_f32 {aa}, {u}, {r1}")
        a(f"v_readlane_b32 {sR[0]}, {r1}, 31")
        a(f"v_readlane_b32 {sR[1]}, {r1}, 63")
        a(f"v_readlane_b32 {sA[0]}, {aa}, 31")
        a(f"v_readlane_b32 {sA[1]}, {aa}, 63")
        for r in range(2):
            for j in range(4):
                a(f"v_pk_mul_f32 {c[r][2 * j:2 * j + 2]}, {c[r][2 * j:2 * j + 2]}, {sA} {sel[r]}")
        for r in range(2):
            for j in range(4):
                a(f"v_cvt_pk_bf16_f32 {self.lnx[r][j]}, {c[r][2 * j]}, {c[r][2 * j + 1]}")
            a(f"ds_write_b128 {vW}, {self.lnx[r]} offset:{320 * r}")
        a(f"v_mov_b32 {t[0][0]}, {sMean[0]}")
        a(f"v_mov_b32 {t[0][1]}, {sMean[1]}")
        a(f"v_mov_b32 {t[0][2]}, {sR[0]}")
        a(f"v_mov_b32 {t[0][3]}, {sR[1]}")
        a(f"ds_write_b64 {vSt}, {t[0][0:2]}")
        a(f"ds_write_b64 {vSt}, {t[0][2:4]} offset:32")
        ntok = None
        if self.cfg.fused:
            a(f"v_mov_b32 {vW}, 0")
            a(f"global_load_dword {t[1][1]}, {vW}, {self.pDbg} sc1")
            ntok = a.vtok()
        a.wait(lg=a.ltok())
        a("s_barrier")
        for j in range(2):
            a(f"ds_read_b64_tr_b16 {c[j][0:2]}, {vR} offset:{128 * j}")
            a(f"ds_read_b64_tr_b16 {c[j][2:4]}, {vR} offset:{128 * j + 1280}")
        a(f"v_and_b32 {vSt}, 3, {self.vLane}")
        a(f"v_lshlrev_b32 {vSt}, 4, {vSt}")
        a(f"ds_read_b128 {t[0]}, {vSt} offset:{stat_lds}" if stat_lds < 65536 else
          f"v_add_u32 {vW}, {stat_lds}, {vSt}\nds_read_b128 {t[0]}, {vW}")
        s0, s1 = self.sT[0], self.sT[1]
        a(f"s_lshl_b32 {s0}, {self.sGrp}, 13")
        a(f"s_lshl_b32 {s1}, {self.sWave}, 11")
        a(f"s_add_u32 {s0}, {s0}, {s1}")
        a(f"s_lshl_b32 {s1}, {self.sGrp}, 6")
        a(f"s_add_u32 {s1}, {s1}, {hex(WS_STAT)}")
        a.wait(lg=a.ltok())
        a(f"buffer_store_dwordx4 {c[0][0:4]}, {self.vL16}, {self.srdWS}, {s0} offen sc1")
        a(f"buffer_store_dwordx4 {c[1][0:4]}, {self.vL16}, {self.srdWS}, {s0} offen offset:1024 sc1")
        a("s_mov_b64 exec, 0xf")
        a(f"buffer_store_dwordx4 {t[0]}, {vSt}, {self.srdWS}, {s1} offen sc1")
        a("s_mov_b64 exec, -1")
        L = a.label('NOZERO')
        a(f"s_or_b32 {s0}, {self.sQ}, {self.sWave}")
        a(f"s_cmp_lg_u32 {s0}, 0")
        a(f"s_cbranch_scc1 {L}")
        n = a.vm_issued
        for j in range(4):
            a(f"v_mov_b32 {c[0][4 + j]}, 0")
        a(f"s_mul_i32 {s0}, {self.sXcd}, 4352")
        a(f"s_add_u32 {s0}, {s0}, {hex(WS_KVZ)}")
        for j in range(4):
            a(f"buffer_store_dwordx4 {c[0][4:8]}, {self.vL16}, {self.srdWS}, {s0} offen offset:{1024 * j} sc1")
        a(f"s_add_u32 {s0}, {s0}, 4096")
        a("s_mov_b64 exec, 0xffff")
        a(f"buffer_store_dwordx4 {c[0][4:8]}, {self.vL16}, {self.srdWS}, {s0} offen sc1")
        a("s_mov_b64 exec, -1")
        a.vm_issued = n
        a(f"{L}:")
        self.ln_store_tok = a.vtok()
        self.ln_tmp = (c, t, vW, vR, vSt)
        self.vNonce = t[1][1]

    def ln_publish(self):
        a, V = self.a, self.V
        c, t, vW, vR, vSt = self.ln_tmp
        if self.cfg.fused:
            a.wait(vm=self.ln_store_tok, force=True)
            L, L2 = a.label('TAG'), a.label('TAGOK')
            a(f"v_readfirstlane_b32 {self.sNonce}, {self.vNonce}")
            a(f"v_mov_b32 {vW}, 0")
            a(f"s_cmp_lg_u32 {self.sNonce}, 0")
            a(f"s_cbranch_scc1 {L2}")
            a(f"{L}:")
            n = a.vm_issued
            a(f"global_load_dword {self.vNonce}, {vW}, {self.pDbg} sc1")
            a.vm_issued = n
            a("s_waitcnt vmcnt(0)")
            a(f"v_readfirstlane_b32 {self.sNonce}, {self.vNonce}")
            a(f"s_cmp_eq_u32 {self.sNonce}, 0")
            a(f"s_cbranch_scc1 {L}")
            a(f"{L2}:")
            s0 = self.sT[0]
            a(f"s_lshl_b32 {s0}, {self.sWave}, 8")
            a(f"s_add_u32 {s0}, {s0}, {self.sGrp}")
            a(f"s_lshl_b32 {s0}, {s0}, 6")
            a(f"s_add_u32 {s0}, {s0}, {hex(WS_F1)}")
            a(f"v_mov_b32 {self.vNonce}, {self.sNonce}")
            a("s_mov_b64 exec, 1")
            a(f"buffer_store_dword {self.vNonce}, {vW}, {self.srdWS}, {s0} offen sc1")
            a("s_mov_b64 exec, -1")
        for r in c + t + [vW, vR, vSt] + self.lnx:
            V.release(r)
        self.stamp()

    def poll_issue(self, voff, soff):
        a = self.a
        v = self.V.alloc()
        a(f"buffer_load_dword {v}, {voff}, {self.srdWS}, {soff} offen sc1")
        return v, a.vtok()

    def poll_check(self, v, tok, voff, soff):
        a = self.a
        L, L2 = a.label('POLL'), a.label('POLLOK')
        a.wait(vm=tok)
        a(f"v_cmp_ne_u32 vcc, {self.sNonce}, {v}")
        a(f"s_cbranch_vccz {L2}")
        a(f"{L}:")
        n = a.vm_issued
        a("s_sleep 2")
        a(f"buffer_load_dword {v}, {voff}, {self.srdWS}, {soff} offen sc1")
        a.vm_issued = n
        a("s_waitcnt vmcnt(0)")
        a(f"v_cmp_ne_u32 vcc, {self.sNonce}, {v}")
        a(f"s_cbranch_vccnz {L}")
        a(f"{L2}:")
        self.V.release(v)

    def s2_setup(self):
        a, V = self.a, self.V
        self.sSt, self.sNt = Reg('s', 100), Reg('s', 101)
        t = self.sT
        a(f"s_lshr_b32 {t[0]}, {self.sXcd}, 1")
        a(f"s_lshl_b32 {t[0]}, {t[0]}, 3")
        a(f"s_and_b32 {t[1]}, {self.sQ}, 7")
        a(f"s_add_u32 {self.sSt}, {t[0]}, {t[1]}")
        a(f"s_and_b32 {t[0]}, {self.sXcd}, 1")
        a(f"s_lshl_b32 {t[0]}, {t[0]}, 2")
        a(f"s_lshr_b32 {t[1]}, {self.sQ}, 3")
        a(f"s_add_u32 {self.sNt}, {t[0]}, {t[1]}")
        self.srd(self.srdW2, self.pW2, 1376 * 4096)
        self.srd(self.srdWo, self.pWo, 512 * 1024)
        self.vS2w2 = [V.alloc(), V.alloc()]
        self.vS2wo = [V.alloc(), V.alloc()]
        self.vS2tr = [V.alloc(), V.alloc()]
        x, y = self.vS2tr
        a(f"v_lshrrev_b32 {x}, 2, {self.vLane}")
        a(f"v_and_b32 {x}, 4, {x}")
        a(f"v_xor_b32 {x}, {x}, {self.vLane}")
        a(f"v_and_b32 {x}, 7, {x}")
        a(f"v_lshlrev_b32 {x}, 4, {x}")
        a(f"v_lshrrev_b32 {y}, 3, {self.vLane}")
        a(f"v_lshl_add_u32 {self.vS2w2[0]}, {y}, 12, {x}")
        a(f"v_add_u32 {self.vS2w2[1]}, {8 * 4096 - 1024}, {self.vS2w2[0]}")
        a(f"v_lshl_add_u32 {self.vS2wo[0]}, {y}, 10, {x}")
        a(f"v_add_u32 {self.vS2wo[1]}, {8 * 1024 - 1024}, {self.vS2wo[0]}")
        a(f"v_lshrrev_b32 {x}, 5, {self.vLane}")
        a(f"v_lshlrev_b32 {x}, 9, {x}")
        a(f"v_bfe_u32 {y}, {self.vLane}, 2, 2")
        a(f"v_lshl_add_u32 {x}, {y}, 7, {x}")
        a(f"v_bfe_u32 {y}, {self.vLane}, 4, 1")
        a(f"v_lshl_add_u32 {x}, {y}, 5, {x}")
        a(f"v_and_b32 {y}, 3, {self.vLane}")
        a(f"v_lshl_add_u32 {x}, {y}, 3, {x}")
        a(f"v_bfe_u32 {y}, {self.vLane}, 3, 1")
        a(f"v_lshl_add_u32 {x}, {y}, 6, {x}")
        self.sRing = Reg('s', 99)
        a(f"s_mul_i32 {self.sRing}, {self.sWave}, {REGION}")
        a(f"s_add_u32 {self.sRing}, {self.sRing}, 18432")
        a(f"v_add_u32 {x}, {self.sRing}, {x}")
        a(f"v_xor_b32 {y}, 64, {x}")
        self.sWoOff, self.sW2Off = Reg('s', 98), Reg('s', 97)
        a(f"s_lshl_b32 {self.sWoOff}, {self.sWave}, 17")
        a(f"s_lshl_b32 {t[0]}, {self.sNt}, 7")
        a(f"s_add_u32 {self.sWoOff}, {self.sWoOff}, {t[0]}")
        a(f"s_mul_i32 {self.sW2Off}, {self.sWave}, {22 * 16 * 4096}")
        a(f"s_lshl_b32 {t[0]}, {self.sSt}, 7")
        a(f"s_add_u32 {self.sW2Off}, {self.sW2Off}, {t[0]}")
        self.s2_n_dma = 0
        self.s2_n_park = 0
        self.s2_dtok = {}
        self.s2_ptok = {}
        self.s2_frag = {}

    S2_STEPS = 30
    S2_SLOTS = 11

    def s2_dma(self):
        a = self.a
        k = self.s2_n_dma
        if k >= self.S2_STEPS:
            return False
        if k >= self.S2_SLOTS:
            if k - self.S2_SLOTS >= self.s2_n_park:
                return False
            a.wait(lg=self.s2_ptok[k - self.S2_SLOTS])
        slot = k % self.S2_SLOTS
        a(f"s_add_u32 m0, {self.sRing}, {slot * 2048}")
        if k < 8:
            srd, vo, so, inc = self.srdWo, self.vS2wo, self.sWoOff, 16 * 1024
        else:
            srd, vo, so, inc = self.srdW2, self.vS2w2, self.sW2Off, 16 * 4096
        a(f"buffer_load_dwordx4 {vo[0]}, {srd}, {so} offen lds")
        a(f"buffer_load_dwordx4 {vo[1]}, {srd}, {so} offen offset:1024 lds")
        a(f"s_add_u32 {so}, {so}, {inc}")
        self.s2_dtok[k] = a.vtok()
        self.s2_n_dma += 1
        return True

    def s2_park(self):
        a = self.a
        k = self.s2_n_park
        if k >= self.s2_n_dma or not self.A.can(8, 4):
            return False
        a.wait(vm=self.s2_dtok[k])
        r = self.A.alloc(8, 4)
        slot = k % self.S2_SLOTS
        for b in range(2):
            a(f"ds_read_b64_tr_b16 {r[4 * b:4 * b + 2]}, {self.vS2tr[b]} offset:{slot * 2048}")
            a(f"ds_read_b64_tr_b16 {r[4 * b + 2:4 * b + 4]}, {self.vS2tr[b]} offset:{slot * 2048 + 1024}")
        self.s2_frag[k] = r
        self.s2_ptok[k] = a.ltok()
        self.s2_n_park += 1
        return True

    def p_block(self):
        a, V, A, cfg = self.a, self.V, self.A, self.cfg
        t = self.sT
        sFt, sDt, sW1, sReg = Reg('s', 96), Reg('s', 95), Reg('s', 94), Reg('s', 93)
        if cfg.fused:
            self.ln_load()
        a(f"s_lshr_b32 {t[0]}, {self.sQ}, 3")
        a(f"s_lshl_b32 {t[0]}, {t[0]}, 3")
        a(f"s_add_u32 {sFt}, {t[0]}, {self.sXcd}")
        a(f"s_and_b32 {sDt}, {self.sQ}, 7")
        self.srd(self.srdW, self.pW1, 2048 * 2752)
        vD = [V.alloc() for _ in range(3)]
        x, y = V.alloc(), V.alloc()
        for j in range(3):
            a(f"v_add_u32 {x}, {64 * j}, {self.vLane}")
            a(f"v_mul_u32_u24 {y}, 5462, {x}")
            a(f"v_lshrrev_b32 {y}, 16, {y}")
            a(f"v_mul_u32_u24 {vD[j]}, {2752 - 192}, {y}")
            a(f"v_lshl_add_u32 {vD[j]}, {x}, 4, {vD[j]}")
            if j:
                a(f"v_subrev_u32 {vD[j]}, {1024 * j}, {vD[j]}")
        a(f"s_mul_i32 {sW1}, {self.sWave}, {512 * 2752}")
        a(f"s_mul_i32 {t[0]}, {sFt}, 192")
        a(f"s_add_u32 {sW1}, {sW1}, {t[0]}")
        a(f"s_mul_i32 {sReg}, {self.sWave}, {REGION}")
        NS = 13
        dtok = {}
        st = {'dma': 0}

        def dma():
            k = st['dma']
            a(f"s_add_u32 m0, {sReg}, {(k % NS) * 3072}")
            for j in range(3):
                a(f"buffer_load_dwordx4 {vD[j]}, {self.srdW}, {sW1} offen offset:{1024 * j} lds")
            a(f"s_add_u32 {sW1}, {sW1}, {16 * 2752}")
            dtok[k] = a.vtok()
            st['dma'] += 1

        for k in range(cfg.E if cfg.fused else NS):
            dma()
        vT, vH = V.alloc(), V.alloc()
        a(f"v_lshrrev_b32 {x}, 5, {self.vLane}")
        a(f"v_bfe_u32 {y}, {self.vLane}, 2, 2")
        a(f"v_lshl_add_u32 {y}, {x}, 3, {y}")
        a(f"v_mul_u32_u24 {vT}, 192, {y}")
        a(f"v_bfe_u32 {y}, {self.vLane}, 4, 1")
        a(f"v_lshl_add_u32 {vT}, {y}, 5, {vT}")
        a(f"v_and_b32 {y}, 3, {self.vLane}")
        a(f"v_lshl_add_u32 {vT}, {y}, 3, {vT}")
        a(f"v_add_u32 {vT}, {sReg}, {vT}")
        a(f"v_and_b32 {y}, 31, {self.vLane}")
        a(f"v_lshlrev_b32 {y}, 4, {y}")
        a(f"v_lshl_add_u32 {vH}, {x}, 13, {y}")
        self.vH = vH
        self.srd(self.srdB, self.pB1, 1376 * 2)
        bias = [V.alloc(4) for _ in range(3)]
        a(f"v_lshlrev_b32 {y}, 3, {x}")
        for i in range(3):
            a(f"s_mul_i32 {t[0]}, {self.sWave}, 3")
            a(f"s_add_u32 {t[0]}, {t[0]}, {i}")
            a(f"s_lshr_b32 {t[0]}, {t[0]}, 1")
            a(f"s_lshl_b32 {t[0]}, {t[0]}, 5")
            a(f"s_mul_i32 {t[1]}, {sFt}, 192")
            a(f"s_add_u32 {t[0]}, {t[0]}, {t[1]}")
            a(f"buffer_load_dwordx2 {bias[i][0:2]}, {y}, {self.srdB}, {t[0]} offen")
            a(f"buffer_load_dwordx2 {bias[i][2:4]}, {y}, {self.srdB}, {t[0]} offen offset:16")
        V.release(x)
        V.release(y)
        if cfg.fused:
            self.code_prefetch()
            self.ln_compute(36864, REGION, 39936)
            while st['dma'] < NS:
                dma()
            self.ln_publish()
            self.s2_setup()
        self.srd(self.srdG, self.pWs, G_BYTES, add=WS_G)

        def tr_reads(dst, k):
            for b in range(3):
                a(f"ds_read_b64_tr_b16 {dst[4 * b:4 * b + 2]}, {vT} offset:{(k % NS) * 3072 + 64 * b}")
                a(f"ds_read_b64_tr_b16 {dst[4 * b + 2:4 * b + 4]}, {vT} offset:{(k % NS) * 3072 + 64 * b + 768}")

        NPARK = 20
        park = []
        ptok = {}
        for k in range(NPARK):
            a.wait(vm=dtok[k])
            r = A.alloc(12, 4)
            park.append(r)
            tr_reads(r, k)
            ptok[k] = a.ltok()
            if k >= 1 and st['dma'] < 32:
                a.wait(lg=ptok[k - 1])
                dma()
        assert st['dma'] == 32
        self.stamp()
        acc = [[V.alloc(16) for db in range(2)] for b in range(3)]
        order = list(range(20, 32)) + list(range(20))
        sH = Reg('s', 92)
        a(f"s_lshl_b32 {sH}, {self.sWave}, 19")
        a(f"s_lshl_b32 {t[0]}, {sDt}, 10")
        a(f"s_add_u32 {sH}, {sH}, {t[0]}")
        if cfg.fused:
            vP = V.alloc()
            a(f"v_lshlrev_b32 {vP}, 6, {self.vLane}")
            a(f"s_lshr_b32 {t[0]}, {sDt}, 1")
            a(f"s_lshl_b32 {t[0]}, {t[0]}, 2")
            a(f"s_add_u32 {t[0]}, {t[0]}, {self.sWave}")
            a(f"s_lshl_b32 {t[0]}, {t[0]}, 12")
            a(f"s_add_u32 {t[0]}, {t[0]}, {hex(WS_F1)}")
            pv, ptk = self.poll_issue(vP, t[0])
            self.poll_check(pv, ptk, vP, t[0])
            V.release(vP)
        self.stamp()
        HN = cfg.HN
        hreg = [V.alloc(8, 4) for _ in range(HN)]
        htok = {}

        def hload(n):
            k = order[n]
            r = hreg[n % HN]
            a(f"s_add_u32 {t[2]}, {sH}, {k * 16384}")
            a(f"buffer_load_dwordx4 {r[0:4]}, {vH}, {self.srdWS}, {t[2]} offen sc1")
            a(f"buffer_load_dwordx4 {r[4:8]}, {vH}, {self.srdWS}, {t[2]} offen offset:512 sc1")
            htok[n] = a.vtok()

        for n in range(HN):
            hload(n)
        wtmp = [V.alloc(12, 4), V.alloc(12, 4)]
        a.wait(vm=dtok[31])
        tr_reads(wtmp[0], order[0])
        wtok = {0: a.ltok()}
        for n in range(32):
            k = order[n]
            if n + 1 < 12:
                tr_reads(wtmp[(n + 1) % 2], order[n + 1])
                wtok[n + 1] = a.ltok()
            if n < 12:
                a.wait(vm=htok[n], lg=wtok[n])
                w = wtmp[n % 2]
            else:
                a.wait(vm=htok[n], lg=ptok[k])
                w = park[k]
            h = hreg[n % HN]
            for b in range(3):
                for db in range(2):
                    c = acc[b][db] if n else '0'
                    a(f"v_mfma_f32_32x32x16_bf16 {acc[b][db]}, {w[4 * b:4 * b + 4]}, {h[4 * db:4 * db + 4]}, {c}")
            if n + HN < 32:
                hload(n + HN)
            if n >= 12:
                A.release(park[k])
            if cfg.fused and n >= 7:
                self.s2_park()
                self.s2_dma()
        for r in hreg + wtmp + vD + [vT]:
            V.release(r)
        self.stamp()
        unit = lambda u: acc[u >> 2][u & 1][8 * ((u >> 1) & 1):8 * ((u >> 1) & 1) + 8]
        vX = V.alloc()
        a(f"v_lshlrev_b32 {vX}, 4, {self.vLane}")
        vXw = V.alloc()
        a(f"v_add_u32 {vXw}, {sReg}, {vX}")
        Lw = [a.label('XW') for _ in range(4)]
        Lj = a.label('XJ')
        own = V.alloc(24, 4)
        for w in range(4):
            a(f"{Lw[w]}:")
            if w < 3:
                a(f"s_cmp_lg_u32 {self.sWave}, {w}")
                a(f"s_cbranch_scc1 {Lw[w + 1]}")
            n0 = a.lg_issued
            for o in range(4):
                if o == w:
                    continue
                d = (o - w - 1) % 4
                for i in range(3):
                    for q in range(2):
                        a(f"ds_write_b128 {vXw}, {unit(3 * o + i)[4 * q:4 * q + 4]} offset:{(d * 6 + i * 2 + q) * 1024}")
            for i in range(3):
                for q in range(4):
                    a(f"v_pk_add_f32 {own[8 * i + 2 * q:8 * i + 2 * q + 2]}, {unit(3 * w + i)[2 * q:2 * q + 2]}, 0")
            if w < 3:
                a.lg_issued = n0
                a(f"s_branch {Lj}")
        a(f"{Lj}:")
        for b in range(3):
            for db in range(2):
                V.release(acc[b][db])
        vRd = [V.alloc() for _ in range(3)]
        for j in range(3):
            a(f"s_add_u32 {t[0]}, {self.sWave}, {1 + j}")
            a(f"s_and_b32 {t[0]}, {t[0]}, 3")
            a(f"s_mul_i32 {t[0]}, {t[0]}, {REGION}")
            a(f"s_add_u32 {t[0]}, {t[0]}, {((2 - j) % 4) * 6144}")
            a(f"v_add_u32 {vRd[j]}, {t[0]}, {vX}")
        a.wait(lg=a.ltok())
        a("s_barrier")
        rd = [V.alloc(24, 4) for _ in range(3)]
        rtok = []
        for i in range(3):
            for j in range(3):
                for q in range(2):
                    a(f"ds_read_b128 {rd[j][8 * i + 4 * q:8 * i + 4 * q + 4]}, {vRd[j]} offset:{(i * 2 + q) * 1024}")
            rtok.append(a.ltok())
        c0 = -2.0 * math.sqrt(2.0 / math.pi) * LOG2E
        sC = self.sP
        a(f"s_mov_b32 {sC[0]}, {f32(c0 * 0.044715)}")
        a(f"s_mov_b32 {sC[1]}, {f32(c0)}")
        vC0 = V.alloc(2)
        a(f"v_mov_b32 {vC0[0]}, {sC[1]}")
        a(f"v_mov_b32 {vC0[1]}, {sC[1]}")
        tb = V.alloc(8, 4)
        for i in range(3):
            u = own[8 * i:8 * i + 8]
            for j in range(4):
                a(f"v_lshlrev_b32 {tb[2 * j]}, 16, {bias[i][j]}")
                a(f"v_and_b32 {tb[2 * j + 1]}, 0xffff0000, {bias[i][j]}")
            if i == 0:
                a.wait(vm=a.vm_done)
            for q in range(4):
                a(f"v_pk_add_f32 {u[2 * q:2 * q + 2]}, {u[2 * q:2 * q + 2]}, {tb[2 * q:2 * q + 2]}")
            a.wait(lg=rtok[i])
            for j in range(3):
                for q in range(4):
                    a(f"v_pk_add_f32 {u[2 * q:2 * q + 2]}, {u[2 * q:2 * q + 2]}, {rd[j][8 * i + 2 * q:8 * i + 2 * q + 2]}")
            for q in range(4):
                a(f"v_pk_mul_f32 {tb[2 * q:2 * q + 2]}, {u[2 * q:2 * q + 2]}, {u[2 * q:2 * q + 2]}")
            for q in range(4):
                a(f"v_pk_fma_f32 {tb[2 * q:2 * q + 2]}, {tb[2 * q:2 * q + 2]}, {sC}, {vC0} op_sel_hi:[1,0,1]")
            for q in range(4):
                a(f"v_pk_mul_f32 {tb[2 * q:2 * q + 2]}, {tb[2 * q:2 * q + 2]}, {u[2 * q:2 * q + 2]}")
            for q in range(8):
                a(f"v_exp_f32 {tb[q]}, {tb[q]}")
            for q in range(4):
                a(f"v_pk_add_f32 {tb[2 * q:2 * q + 2]}, {tb[2 * q:2 * q + 2]}, 1.0 op_sel_hi:[1,0]")
            for q in range(8):
                a(f"v_rcp_f32 {tb[q]}, {tb[q]}")
            for q in range(4):
                a(f"v_pk_mul_f32 {u[2 * q:2 * q + 2]}, {u[2 * q:2 * q + 2]}, {tb[2 * q:2 * q + 2]}")
            for q in range(4):
                a(f"v_cvt_pk_bf16_f32 {u[q]}, {u[2 * q]}, {u[2 * q + 1]}")
            a(f"s_mul_i32 {t[0]}, {self.sWave}, 3")
            a(f"s_add_u32 {t[0]}, {t[0]}, {i}")
            a(f"s_and_b32 {t[1]}, {t[0]}, 1")
            a(f"s_lshl_b32 {t[1]}, {t[1]}, 9")
            a(f"s_lshr_b32 {t[0]}, {t[0]}, 1")
            a(f"s_mul_i32 {t[2]}, {sFt}, 6")
            a(f"s_add_u32 {t[0]}, {t[0]}, {t[2]}")
            a(f"s_lshl_b32 {t[0]}, {t[0]}, 14")
            a(f"s_add_u32 {t[0]}, {t[0]}, {t[1]}")
            a(f"s_lshl_b32 {t[1]}, {sDt}, 10")
            a(f"s_add_u32 {t[0]}, {t[0]}, {t[1]}")
            a(f"buffer_store_dwordx4 {u[0:4]}, {vH}, {self.srdG}, {t[0]} offen sc1")
        gtok = a.vtok()
        for r in rd + vRd + bias + [tb, vC0, vXw]:
            V.release(r)
        self.stamp()
        if cfg.fused:
            for _ in range(3):
                self.s2_park()
                self.s2_dma()
            a.wait(vm=gtok)
            a(f"s_lshl_b32 {t[0]}, {sDt}, 4")
            a(f"s_add_u32 {t[0]}, {t[0]}, {sFt}")
            a(f"s_lshl_b32 {t[0]}, {t[0]}, 2")
            a(f"s_add_u32 {t[0]}, {t[0]}, {self.sWave}")
            a(f"s_lshl_b32 {t[0]}, {t[0]}, 6")
            a(f"s_add_u32 {t[0]}, {t[0]}, {hex(WS_F2)}")
            a(f"v_mov_b32 {own[4]}, {self.sNonce}")
            a(f"v_mov_b32 {own[5]}, 0")
            a("s_mov_b64 exec, 1")
            a(f"buffer_store_dword {own[4]}, {own[5]}, {self.srdWS}, {t[0]} offen sc1")
            a("s_mov_b64 exec, -1")
        V.release(own)
        V.release(vX)

    def q_block(self):
        a, V, A, cfg = self.a, self.V, self.A, self.cfg
        t = self.sT
        sRt, sCg, sXo, sWo = Reg('s', 96), Reg('s', 95), Reg('s', 94), Reg('s', 93)
        sRh, sHp = Reg('s', 92), Reg('s', 91)
        if cfg.fused:
            self.ln_load()
        a(f"s_lshr_b32 {t[0]}, {self.sXcd}, 1")
        a(f"s_lshl_b32 {t[0]}, {t[0]}, 2")
        a(f"s_and_b32 {t[1]}, {self.sQ}, 3")
        a(f"s_add_u32 {sRt}, {t[0]}, {t[1]}")
        a(f"s_and_b32 {t[0]}, {self.sXcd}, 1")
        a(f"s_lshl_b32 {t[0]}, {t[0]}, 2")
        a(f"s_bfe_u32 {t[1]}, {self.sQ}, 0x20002")
        a(f"s_add_u32 {sCg}, {t[0]}, {t[1]}")
        a(f"s_and_b32 {sRh}, {self.sWave}, 1")
        a(f"s_lshr_b32 {sHp}, {self.sWave}, 1")
        self.srd(self.srdW, self.pWqkv, 512 * 3072)
        vDx = [V.alloc() for _ in range(4)]
        vDw = [V.alloc() for _ in range(2)]
        x, y = V.alloc(), V.alloc()
        a(f"v_lshrrev_b32 {x}, 4, {self.vLane}")
        a(f"v_xor_b32 {x}, {x}, {self.vLane}")
        a(f"v_and_b32 {x}, 7, {x}")
        a(f"v_lshlrev_b32 {x}, 4, {x}")
        a(f"v_lshrrev_b32 {y}, 3, {self.vLane}")
        a(f"v_lshl_add_u32 {vDx[0]}, {y}, 10, {x}")
        a(f"v_xor_b32 {vDx[1]}, 64, {vDx[0]}")
        a(f"v_add_u32 {vDx[1]}, {8192 - 1024}, {vDx[1]}")
        a(f"v_add_u32 {vDx[2]}, {2 * (8192 - 1024)}, {vDx[0]}")
        a(f"v_add_u32 {vDx[3]}, {2 * (8192 - 1024)}, {vDx[1]}")
        a(f"v_lshrrev_b32 {x}, 2, {self.vLane}")
        a(f"v_and_b32 {x}, 4, {x}")
        a(f"v_xor_b32 {x}, {x}, {self.vLane}")
        a(f"v_and_b32 {x}, 7, {x}")
        a(f"v_lshlrev_b32 {x}, 4, {x}")
        a(f"v_mul_u32_u24 {vDw[0]}, 3072, {y}")
        a(f"v_add_u32 {vDw[0]}, {vDw[0]}, {x}")
        a(f"v_add_u32 {vDw[1]}, {8 * 3072 - 1024}, {vDw[0]}")
        a(f"s_lshl_b32 {sXo}, {sRt}, 2")
        a(f"s_add_u32 {sXo}, {sXo}, {self.sWave}")
        a(f"s_lshl_b32 {sXo}, {sXo}, 15")
        a(f"s_mul_i32 {sWo}, {self.sWave}, {16 * 3072}")
        a(f"s_lshl_b32 {t[0]}, {sCg}, 7")
        a(f"s_add_u32 {sWo}, {sWo}, {t[0]}")
        sMx, sMw = Reg('s', 90), Reg('s', 89)
        a(f"s_lshl_b32 {sMx}, {self.sWave}, 12")
        a(f"s_lshl_b32 {sMw}, {self.sWave}, 11")
        a(f"s_add_u32 {sMw}, {sMw}, 16384")
        dtok = {}

        def dma(s):
            base = (s % 4) * REGION
            a(f"s_add_u32 m0, {sMx}, {base}")
            for i in range(4):
                a(f"buffer_load_dwordx4 {vDx[i]}, {self.srdX}, {sXo} offen offset:{1024 * i} lds")
            a(f"s_add_u32 {sXo}, {sXo}, 128")
            for seg in range(3):
                a(f"s_add_u32 m0, {sMw}, {base + seg * 8192}")
                a(f"s_add_u32 {t[3]}, {sWo}, {seg * 1024}")
                for o in range(2):
                    a(f"buffer_load_dwordx4 {vDw[o]}, {self.srdW}, {t[3]} offen offset:{1024 * o} lds")
            a(f"s_add_u32 {sWo}, {sWo}, {64 * 3072}")
            dtok[s] = a.vtok()

        for s in range(3):
            dma(s)
        vRx = [V.alloc() for _ in range(4)]
        vRw = V.alloc()
        a(f"v_and_b32 {x}, 31, {self.vLane}")
        a(f"v_lshlrev_b32 {y}, 7, {x}")
        a(f"s_lshl_b32 {t[0]}, {sRh}, 13")
        a(f"v_add_u32 {y}, {t[0]}, {y}")
        a(f"v_bfe_u32 {x}, {self.vLane}, 1, 3")
        a(f"v_lshrrev_b32 {vRw}, 5, {self.vLane}")
        a(f"v_xor_b32 {x}, {x}, {vRw}")
        for kk in range(4):
            a(f"v_xor_b32 {vRx[kk]}, {2 * kk}, {x}")
            a(f"v_lshl_add_u32 {vRx[kk]}, {vRx[kk]}, 4, {y}")
        a(f"v_lshlrev_b32 {vRw}, 10, {vRw}")
        a(f"v_bfe_u32 {x}, {self.vLane}, 2, 2")
        a(f"v_lshl_add_u32 {vRw}, {x}, 7, {vRw}")
        a(f"v_bfe_u32 {x}, {self.vLane}, 4, 1")
        a(f"v_lshl_add_u32 {vRw}, {x}, 5, {vRw}")
        a(f"v_and_b32 {x}, 3, {self.vLane}")
        a(f"v_lshl_add_u32 {vRw}, {x}, 3, {vRw}")
        a(f"v_bfe_u32 {x}, {self.vLane}, 3, 1")
        a(f"v_xor_b32 {x}, {sHp}, {x}")
        a(f"v_lshl_add_u32 {vRw}, {x}, 6, {vRw}")
        a(f"v_add_u32 {vRw}, 16384, {vRw}")
        ones = V.alloc(4)
        for j in range(4):
            a(f"v_mov_b32 {ones[j]}, 0x3f803f80")
        V.release(x)
        V.release(y)
        if cfg.fused:
            self.code_prefetch()
            self.ln_compute(3 * REGION, 4096, 3 * REGION + 16384)
            self.ln_publish()
            self.s2_setup()
        Dq = [V.alloc(16), V.alloc(16)]
        Dk = [V.alloc(16), V.alloc(16)]
        Dv = [V.alloc(16), V.alloc(16)]
        Cq, Ck, Cv = V.alloc(16), V.alloc(16), V.alloc(16)
        fx = [V.alloc(8, 4), V.alloc(8, 4)]
        fw = [V.alloc(12, 4), V.alloc(12, 4)]
        slot_off = {'x': [0] * 4, 'w': 0}

        def reads(s, kk):
            base = (s % 4) * REGION
            b = (4 * s + kk) % 2
            if slot_off['x'][kk] != base:
                d = base - slot_off['x'][kk]
                a(f"v_add_u32 {vRx[kk]}, {d}, {vRx[kk]}" if d > 0 else f"v_subrev_u32 {vRx[kk]}, {-d}, {vRx[kk]}")
                slot_off['x'][kk] = base
            if slot_off['w'] != base:
                d = base - slot_off['w']
                a(f"v_add_u32 {vRw}, {d}, {vRw}" if d > 0 else f"v_subrev_u32 {vRw}, {-d}, {vRw}")
                slot_off['w'] = base
            for rb in range(2):
                a(f"ds_read_b128 {fx[b][4 * rb:4 * rb + 4]}, {vRx[kk]} offset:{4096 * rb}")
            for seg in range(3):
                a(f"ds_read_b64_tr_b16 {fw[b][4 * seg:4 * seg + 2]}, {vRw} offset:{seg * 8192 + kk * 2048}")
                a(f"ds_read_b64_tr_b16 {fw[b][4 * seg + 2:4 * seg + 4]}, {vRw} offset:{seg * 8192 + kk * 2048 + 512}")
            return a.ltok()

        def mfmas(n):
            b = n % 2
            z = lambda r: r if n else '0'
            M = "v_mfma_f32_32x32x16_bf16"
            for rb in range(2):
                xf = fx[b][4 * rb:4 * rb + 4]
                a(f"{M} {Dq[rb]}, {fw[b][0:4]}, {xf}, {z(Dq[rb])}")
                a(f"{M} {Dk[rb]}, {xf}, {fw[b][4:8]}, {z(Dk[rb])}")
                a(f"{M} {Dv[rb]}, {xf}, {fw[b][8:12]}, {z(Dv[rb])}")
            a(f"{M} {Cq}, {fw[b][0:4]}, {ones}, {z(Cq)}")
            a(f"{M} {Ck}, {ones}, {fw[b][4:8]}, {z(Ck)}")
            a(f"{M} {Cv}, {ones}, {fw[b][8:12]}, {z(Cv)}")

        vP = None
        a.wait(vm=dtok[0], lg=a.ltok())
        a("s_barrier")
        self.stamp()
        dma(3)
        rtok = reads(0, 0)
        for s in range(8):
            for kk in range(4):
                n = 4 * s + kk
                if kk < 3:
                    nt = reads(s, kk + 1)
                    a.wait(lg=rtok)
                elif s < 7:
                    a.wait(vm=dtok[s + 1], lg=rtok)
                    a("s_barrier")
                    nt = reads(s + 1, 0)
                    if s + 4 < 8:
                        dma(s + 4)
                else:
                    a.wait(lg=rtok)
                    a("s_barrier")
                    nt = None
                if cfg.fused and s == 7 and kk == 0:
                    vP = V.alloc()
                    a(f"v_and_b32 {vP}, 15, {self.vLane}")
                    a(f"s_lshl_b32 {t[0]}, {sRt}, 4")
                    a(f"v_add_u32 {vP}, {t[0]}, {vP}")
                    a(f"s_lshl_b32 {t[0]}, {sCg}, 5")
                    tmp = V.alloc()
                    a(f"v_mov_b32 {tmp}, {t[0]}")
                    a(f"v_cmp_gt_u32 vcc, 16, {self.vLane}")
                    a(f"v_cndmask_b32 {vP}, {tmp}, {vP}, vcc")
                    V.release(tmp)
                    a(f"v_lshlrev_b32 {vP}, 6, {vP}")
                    a(f"s_mov_b32 {t[4]}, {hex(WS_F1)}")
                    pv, ptk = self.poll_issue(vP, t[4])
                mfmas(n)
                rtok = nt
        for r in fx + fw + vDx + vDw + vRx + [vRw]:
            V.release(r)
        self.stamp()
        if cfg.fused:
            self.poll_check(pv, ptk, vP, t[4])
            V.release(vP)
        self.stamp()
        vS = V.alloc()
        mq = [V.alloc(2), V.alloc(2)]
        mk = [V.alloc(16), V.alloc(16)]
        rk = [V.alloc(16), V.alloc(16)]
        sS = t[5]
        a(f"s_lshl_b32 {sS}, {sRt}, 1")
        a(f"s_add_u32 {sS}, {sS}, {sRh}")
        a(f"s_lshl_b32 {sS}, {sS}, 9")
        a(f"s_add_u32 {sS}, {sS}, {hex(WS_STAT)}")
        x = V.alloc()
        a(f"v_bfe_u32 {vS}, {self.vLane}, 3, 2")
        a(f"v_lshlrev_b32 {vS}, 6, {vS}")
        a(f"v_and_b32 {x}, 7, {self.vLane}")
        a(f"v_lshl_add_u32 {vS}, {x}, 2, {vS}")
        for rb in range(2):
            a(f"buffer_load_dword {mq[rb][0]}, {vS}, {self.srdWS}, {sS} offen offset:{256 * rb} sc1")
            a(f"buffer_load_dword {mq[rb][1]}, {vS}, {self.srdWS}, {sS} offen offset:{256 * rb + 32} sc1")
        qtok = a.vtok()
        a(f"v_lshrrev_b32 {x}, 5, {self.vLane}")
        a(f"v_lshlrev_b32 {x}, 4, {x}")
        ktok = []
        for rb in range(2):
            for q in range(4):
                a(f"buffer_load_dwordx4 {mk[rb][4 * q:4 * q + 4]}, {x}, {self.srdWS}, {sS} offen offset:{256 * rb + 64 * q} sc1")
                a(f"buffer_load_dwordx4 {rk[rb][4 * q:4 * q + 4]}, {x}, {self.srdWS}, {sS} offen offset:{256 * rb + 64 * q + 32} sc1")
            ktok.append(a.vtok())
        if cfg.fused:
            for _ in range(self.S2_SLOTS):
                self.s2_dma()
        sK = self.sP
        tb = V.alloc(16)
        rl = V.alloc(2)
        sE = self.sP2
        a(f"s_mov_b32 {sE[0]}, {f32(1e-6)}")
        a(f"s_mov_b32 {sE[1]}, {f32(LOG2E)}")

        def phi(D):
            for j in range(16):
                a(f"v_exp_f32 {tb[j]}, {tb[j]} clamp")
            for j in range(16):
                a(f"v_max_f32 {D[j]}, {D[j]}, {tb[j]}")
            for j in range(8):
                a(f"v_pk_add_f32 {D[2 * j:2 * j + 2]}, {D[2 * j:2 * j + 2]}, {sE} op_sel_hi:[1,0]")
            for j in range(8):
                a(f"v_cvt_pk_bf16_f32 {D[j]}, {D[2 * j]}, {D[2 * j + 1]}")

        vQ = V.alloc()
        a(f"v_lshlrev_b32 {vQ}, 4, {self.vLane}")
        sQo = t[6]
        a(f"s_lshl_b32 {sQo}, {sCg}, 1")
        a(f"s_add_u32 {sQo}, {sQo}, {sHp}")
        a(f"s_lshl_b32 {sQo}, {sQo}, 17")
        a(f"s_lshl_b32 {t[0]}, {sRt}, 1")
        a(f"s_add_u32 {t[0]}, {t[0]}, {sRh}")
        a(f"s_lshl_b32 {t[0]}, {t[0]}, 11")
        a(f"s_add_u32 {sQo}, {sQo}, {t[0]}")
        a(f"s_add_u32 {sQo}, {sQo}, {hex(WS_PQ)}")
        a(f"s_add_u32 {t[7]}, {sQo}, 0x10000")
        a.wait(vm=qtok)
        for rb in range(2):
            D = Dq[rb]
            a(f"v_mul_f32 {rl[0]}, {sE[1]}, {mq[rb][1]}")
            for j in range(8):
                a(f"v_pk_fma_f32 {D[2 * j:2 * j + 2]}, {Cq[2 * j:2 * j + 2]}, {mq[rb]}, {D[2 * j:2 * j + 2]} op_sel_hi:[1,0,1] neg_lo:[1,0,0] neg_hi:[1,0,0]")
            for j in range(8):
                a(f"v_pk_mul_f32 {tb[2 * j:2 * j + 2]}, {D[2 * j:2 * j + 2]}, {rl[0:2]} op_sel_hi:[1,0]")
            for j in range(8):
                a(f"v_pk_fma_f32 {D[2 * j:2 * j + 2]}, {D[2 * j:2 * j + 2]}, {mq[rb]}, 1.0 op_sel:[0,1,0] op_sel_hi:[1,1,0]")
            phi(D)
            a(f"buffer_store_dwordx4 {D[0:4]}, {vQ}, {self.srdWS}, {sQo} offen offset:{1024 * rb} sc1")
            a(f"buffer_store_dwordx4 {D[4:8]}, {vQ}, {self.srdWS}, {t[7]} offen offset:{1024 * rb} sc1")
        KV, Z = Cq, Dq[0]
        M = "v_mfma_f32_32x32x16_bf16"
        for rb in range(2):
            a.wait(vm=ktok[rb])
            D = Dv[rb]
            for j in range(8):
                a(f"v_pk_fma_f32 {D[2 * j:2 * j + 2]}, {mk[rb][2 * j:2 * j + 2]}, {Cv[0:2]}, {D[2 * j:2 * j + 2]} neg_lo:[1,0,0] neg_hi:[1,0,0]")
            for j in range(8):
                a(f"v_pk_mul_f32 {D[2 * j:2 * j + 2]}, {D[2 * j:2 * j + 2]}, {rk[rb][2 * j:2 * j + 2]}")
            for j in range(8):
                a(f"v_cvt_pk_bf16_f32 {D[j]}, {D[2 * j]}, {D[2 * j + 1]}")
            D = Dk[rb]
            for j in range(8):
                a(f"v_pk_fma_f32 {D[2 * j:2 * j + 2]}, {mk[rb][2 * j:2 * j + 2]}, {Ck[0:2]}, {D[2 * j:2 * j + 2]} neg_lo:[1,0,0] neg_hi:[1,0,0]")
            for j in range(8):
                a(f"v_pk_mul_f32 {D[2 * j:2 * j + 2]}, {D[2 * j:2 * j + 2]}, {rk[rb][2 * j:2 * j + 2]}")
            for j in range(8):
                a(f"v_pk_mul_f32 {tb[2 * j:2 * j + 2]}, {D[2 * j:2 * j + 2]}, {sE} op_sel:[0,1] op_sel_hi:[1,1]")
            for j in range(8):
                a(f"v_pk_add_f32 {D[2 * j:2 * j + 2]}, {D[2 * j:2 * j + 2]}, 1.0 op_sel_hi:[1,0]")
            phi(D)
            for h in range(2):
                z = (lambda r: r) if (rb or h) else (lambda r: '0')
                a(f"{M} {KV}, {Dk[rb][4 * h:4 * h + 4]}, {Dv[rb][4 * h:4 * h + 4]}, {z(KV)}")
                a(f"{M} {Z}, {Dk[rb][4 * h:4 * h + 4]}, {ones}, {z(Z)}")
        vA, vB = V.alloc(), x
        a(f"v_bfe_u32 {vA}, {self.vLane}, 4, 1")
        a(f"v_mul_u32_u24 {vA}, 1088, {vA}")
        a(f"v_lshrrev_b32 {vB}, 5, {self.vLane}")
        a(f"v_mul_u32_u24 {vB}, 272, {vB}")
        a(f"v_add_u32 {vA}, {vA}, {vB}")
        a(f"s_mul_i32 {t[0]}, {sRh}, 4352")
        a(f"s_mul_i32 {t[1]}, {sHp}, 2176")
        a(f"s_add_u32 {t[0]}, {t[0]}, {t[1]}")
        a(f"v_add_u32 {vA}, {t[0]}, {vA}")
        a(f"v_and_b32 {vB}, 15, {self.vLane}")
        a(f"v_lshl_add_u32 {vB}, {vB}, 4, {vA}")
        a(f"v_and_b32 {tb[0]}, 16, {self.vLane}")
        a(f"v_cmp_eq_u32 vcc, 0, {tb[0]}")
        for j in range(8):
            a(f"v_cndmask_b32 {tb[j]}, {KV[8 + j]}, {KV[j]}, vcc")
        for j in range(8):
            a(f"v_cndmask_b32 {tb[8 + j]}, {Z[8 + j]}, {Z[j]}, vcc")
        for j in range(2):
            a(f"ds_write_b128 {vB}, {tb[4 * j:4 * j + 4]} offset:{544 * j}")
            a(f"ds_write_b128 {vA}, {tb[8 + 4 * j:12 + 4 * j]} offset:{544 * j + 256}")
        a(f"v_lshlrev_b32 {vA}, 2, v0")
        a.wait(lg=a.ltok())
        a("s_barrier")
        for j in range(5):
            a(f"ds_read_b32 {tb[j]}, {vA} offset:{1024 * j}")
            a(f"ds_read_b32 {tb[8 + j]}, {vA} offset:{1024 * j + 4352}")
        a(f"s_mul_i32 {t[0]}, {sCg}, 4352")
        a(f"s_add_u32 {t[0]}, {t[0]}, {hex(WS_KVZ)}")
        a(f"s_add_u32 {t[1]}, {t[0]}, 4096")
        a.wait(lg=a.ltok())
        for j in range(5):
            a(f"v_add_f32 {tb[j]}, {tb[j]}, {tb[8 + j]}")
        for j in range(4):
            a(f"buffer_atomic_add_f32 {tb[j]}, {vA}, {self.srdWS}, {t[0]} offen offset:{1024 * j} sc0")
        L = a.label('AT5')
        a(f"s_cmp_lg_u32 {self.sWave}, 0")
        a(f"s_cbranch_scc1 {L}")
        n = a.vm_issued
        a(f"buffer_atomic_add_f32 {tb[4]}, {vA}, {self.srdWS}, {t[1]} offen sc0")
        a.vm_issued = n
        a(f"{L}:")
        atok = a.vtok()
        self.stamp()
        if cfg.fused:
            for _ in range(6):
                self.s2_park()
                self.s2_dma()
            a.wait(vm=atok, force=True)
            a("s_barrier")
            L = a.label('QF')
            a(f"s_cmp_lg_u32 {self.sWave}, 0")
            a(f"s_cbranch_scc1 {L}")
            a(f"s_lshl_b32 {t[0]}, {sCg}, 4")
            a(f"s_add_u32 {t[0]}, {t[0]}, {sRt}")
            a(f"s_lshl_b32 {t[0]}, {t[0]}, 6")
            a(f"s_add_u32 {t[0]}, {t[0]}, {hex(WS_F2 + 512 * 64)}")
            a(f"v_mov_b32 {rl[0]}, {self.sNonce}")
            a(f"v_mov_b32 {rl[1]}, 0")
            a("s_mov_b64 exec, 1")
            n = a.vm_issued
            a(f"buffer_store_dword {rl[0]}, {rl[1]}, {self.srdWS}, {t[0]} offen sc1")
            a.vm_issued = n
            a("s_mov_b64 exec, -1")
            a(f"{L}:")
        else:
            a.wait_all()
        for r in Dq + Dk + Dv + mq + mk + rk + [Cq, Ck, Cv, ones, tb, rl, vS, vQ, vA, x]:
            V.release(r)
        self.vH = V.alloc()
        x = V.alloc()
        a(f"v_lshrrev_b32 {x}, 5, {self.vLane}")
        a(f"v_and_b32 {self.vH}, 31, {self.vLane}")
        a(f"v_lshlrev_b32 {self.vH}, 4, {self.vH}")
        a(f"v_lshl_add_u32 {self.vH}, {x}, 13, {self.vH}")
        V.release(x)
        self.srd(self.srdG, self.pWs, G_BYTES, add=WS_G)

    def s2_block(self):
        a, V, A, cfg = self.a, self.V, self.A, self.cfg
        t = self.sT
        M = "v_mfma_f32_32x32x16_bf16"
        vH = self.vH
        while self.s2_n_park < self.S2_STEPS:
            p = self.s2_dma()
            if self.s2_n_dma == self.S2_STEPS or self.s2_n_dma - self.s2_n_park >= self.S2_SLOTS:
                assert self.s2_park()
        self.stamp()
        vP = V.alloc()
        if cfg.fused:
            a(f"v_and_b32 {vP}, 31, {self.vLane}")
            a(f"v_lshlrev_b32 {vP}, 6, {vP}")
            a(f"s_lshl_b32 {t[0]}, {self.sWave}, 11")
            a(f"s_add_u32 {t[0]}, {t[0]}, {hex(WS_F2 + 512 * 64)}")
            pv, ptk = self.poll_issue(vP, t[0])
            self.poll_check(pv, ptk, vP, t[0])
        self.stamp()
        vK, vQ = V.alloc(), V.alloc()
        a(f"v_and_b32 {vK}, 31, {self.vLane}")
        a(f"v_min_u32 {vK}, 16, {vK}")
        a(f"v_lshlrev_b32 {vK}, 4, {vK}")
        a(f"v_lshrrev_b32 {vQ}, 5, {self.vLane}")
        a(f"v_mul_u32_u24 {vQ}, 272, {vQ}")
        a(f"v_add_u32 {vK}, {vK}, {vQ}")
        a(f"v_lshlrev_b32 {vQ}, 4, {self.vLane}")
        a(f"s_mul_i32 {t[1]}, {self.sWave}, {8 * 1088}")
        a(f"s_add_u32 {t[1]}, {t[1]}, {hex(WS_KVZ)}")
        a(f"s_lshl_b32 {t[2]}, {self.sWave}, 19")
        a(f"s_lshl_b32 {t[3]}, {self.sSt}, 11")
        a(f"s_add_u32 {t[2]}, {t[2]}, {t[3]}")
        a(f"s_add_u32 {t[2]}, {t[2]}, {hex(WS_PQ)}")
        kv = [V.alloc(8, 4) for _ in range(8)]
        pq = [V.alloc(8, 4) for _ in range(8)]
        htok = []
        for h in range(8):
            a(f"buffer_load_dwordx4 {kv[h][0:4]}, {vK}, {self.srdWS}, {t[1]} offen sc1")
            a(f"buffer_load_dwordx4 {kv[h][4:8]}, {vK}, {self.srdWS}, {t[1]} offen offset:544 sc1")
            a(f"buffer_load_dwordx4 {pq[h][0:4]}, {vQ}, {self.srdWS}, {t[2]} offen sc1")
            a(f"buffer_load_dwordx4 {pq[h][4:8]}, {vQ}, {self.srdWS}, {t[2]} offen offset:1024 sc1")
            htok.append(a.vtok())
            if h < 7:
                a(f"s_add_u32 {t[1]}, {t[1]}, 1088")
                a(f"s_add_u32 {t[2]}, {t[2]}, 0x10000")
        V.release(vK)
        if cfg.fused:
            a(f"s_mul_i32 {t[4]}, {self.sWave}, 11")
            a(f"s_mul_i32 {t[4]}, {t[4]}, 21846")
            a(f"s_lshr_b32 {t[4]}, {t[4]}, 16")
            a(f"s_mul_i32 {t[5]}, {self.sWave}, 22")
            a(f"s_add_u32 {t[5]}, {t[5]}, 21")
            a(f"s_min_u32 {t[5]}, {t[5]}, 85")
            a(f"s_mul_i32 {t[5]}, {t[5]}, 10923")
            a(f"s_lshr_b32 {t[5]}, {t[5]}, 16")
            a(f"s_sub_u32 {t[5]}, {t[5]}, {t[4]}")
            a(f"s_lshl_b32 {t[5]}, {t[5]}, 2")
            a(f"s_add_u32 {t[5]}, {t[5]}, 3")
            a(f"v_min_u32 {vP}, {t[5]}, {self.vLane}")
            a(f"v_lshlrev_b32 {vP}, 6, {vP}")
            a(f"s_lshl_b32 {t[5]}, {self.sNt}, 4")
            a(f"s_add_u32 {t[4]}, {t[4]}, {t[5]}")
            a(f"s_lshl_b32 {t[4]}, {t[4]}, 8")
            a(f"s_add_u32 {t[4]}, {t[4]}, {hex(WS_F2)}")
        acc = [[V.alloc(16) for sb in range(2)] for nb in range(2)]
        tmp = [V.alloc(16), V.alloc(16)]
        of = [V.alloc(4), V.alloc(4)]
        sE = self.sP
        a(f"s_mov_b32 {sE[0]}, {f32(1e-6)}")

        def num(h):
            a.wait(vm=htok[h])
            for j in range(4):
                a(f"v_cvt_pk_bf16_f32 {kv[h][j]}, {kv[h][2 * j]}, {kv[h][2 * j + 1]}")
            for sb in range(2):
                a(f"{M} {tmp[sb]}, {kv[h][0:4]}, {pq[h][4 * sb:4 * sb + 4]}, 0")

        def norm(h):
            for sb in range(2):
                a(f"v_add_f32 {tmp[sb][8]}, {sE[0]}, {tmp[sb][8]}")
            for sb in range(2):
                a(f"v_rcp_f32 {tmp[sb][8]}, {tmp[sb][8]}")
            for sb in range(2):
                for j in range(4):
                    a(f"v_pk_mul_f32 {tmp[sb][2 * j:2 * j + 2]}, {tmp[sb][2 * j:2 * j + 2]}, {tmp[sb][8:10]} op_sel_hi:[1,0]")
                for j in range(4):
                    a(f"v_cvt_pk_bf16_f32 {of[sb][j]}, {tmp[sb][2 * j]}, {tmp[sb][2 * j + 1]}")

        def main(h):
            w = self.s2_frag[h]
            a.wait(lg=self.s2_ptok[h])
            for nb in range(2):
                for sb in range(2):
                    c = acc[nb][sb] if h else '0'
                    a(f"{M} {acc[nb][sb]}, {w[4 * nb:4 * nb + 4]}, {of[sb]}, {c}")

        num(0)
        for h in range(8):
            norm(h)
            if h < 7:
                num(h + 1)
            main(h)
            V.release(kv[h])
            V.release(pq[h])
            A.release(self.s2_frag[h])
        for r in tmp + of:
            V.release(r)
        self.stamp()
        if cfg.fused:
            pv, ptk = self.poll_issue(vP, t[4])
            self.poll_check(pv, ptk, vP, t[4])
        V.release(vP)
        self.stamp()
        a(f"s_mul_i32 {t[1]}, {self.sWave}, {22 * 16384}")
        a(f"s_lshl_b32 {t[2]}, {self.sNt}, 10")
        a(f"s_add_u32 {t[1]}, {t[1]}, {t[2]}")
        g = []
        gtok = []
        xres = V.alloc(8, 4)
        vb2 = V.alloc()
        for k in range(22):
            r = V.alloc(8, 4) if V.can(8, 4) and V.nfree() > 20 else A.alloc(8, 4)
            g.append(r)
            a(f"buffer_load_dwordx4 {r[0:4]}, {vH}, {self.srdG}, {t[1]} offen sc1")
            a(f"buffer_load_dwordx4 {r[4:8]}, {vH}, {self.srdG}, {t[1]} offen offset:512 sc1")
            gtok.append(a.vtok())
            if k < 21:
                a(f"s_add_u32 {t[1]}, {t[1]}, 16384")
        vO = V.alloc()
        self.srd(self.srdO, self.pOut, 2048 * 1024)
        self.srd(self.srdB, self.pB2, 2048 * 2)
        a(f"v_and_b32 {vb2}, 31, {self.vLane}")
        a(f"v_lshrrev_b32 {vO}, 5, {self.vLane}")
        a(f"v_lshlrev_b32 {vO}, 4, {vO}")
        a(f"v_lshl_add_u32 {vO}, {vb2}, 10, {vO}")
        a(f"v_lshlrev_b32 {vb2}, 1, {vb2}")
        a(f"s_lshr_b32 {t[2]}, {self.sWave}, 1")
        a(f"s_lshl_b32 {t[3]}, {self.sSt}, 1")
        a(f"s_add_u32 {t[2]}, {t[2]}, {t[3]}")
        a(f"s_lshl_b32 {t[3]}, {t[2]}, 6")
        a(f"s_lshl_b32 {t[2]}, {t[2]}, 15")
        a(f"s_and_b32 {t[4]}, {self.sWave}, 1")
        a(f"s_lshl_b32 {t[5]}, {self.sNt}, 1")
        a(f"s_add_u32 {t[4]}, {t[4]}, {t[5]}")
        a(f"s_lshl_b32 {t[4]}, {t[4]}, 6")
        a(f"s_add_u32 {t[2]}, {t[2]}, {t[4]}")
        a(f"buffer_load_dwordx4 {xres[0:4]}, {vO}, {self.srdX}, {t[2]} offen")
        a(f"buffer_load_dwordx4 {xres[4:8]}, {vO}, {self.srdX}, {t[2]} offen offset:32")
        a(f"buffer_load_ushort {vb2}, {vb2}, {self.srdB}, {t[3]} offen")
        xtok = a.vtok()
        for k in range(22):
            w = self.s2_frag[8 + k]
            a.wait(vm=gtok[k], lg=self.s2_ptok[8 + k])
            for nb in range(2):
                for sb in range(2):
                    a(f"{M} {acc[nb][sb]}, {g[k][4 * nb:4 * nb + 4]}, {w[4 * sb:4 * sb + 4]}, {acc[nb][sb]}")
        for k in range(22):
            (V if g[k].cls == 'v' else A).release(g[k])
            A.release(self.s2_frag[8 + k])
        self.stamp()
        blk = lambda o: acc[o & 1][o >> 1]
        vXw = V.alloc()
        sReg = t[6]
        a(f"s_mul_i32 {sReg}, {self.sWave}, {REGION}")
        a(f"v_add_u32 {vXw}, {sReg}, {vQ}")
        own = V.alloc(16)
        Lw = [a.label('YW') for _ in range(4)]
        Lj = a.label('YJ')
        if cfg.fused:
            a("s_barrier")
        for w in range(4):
            a(f"{Lw[w]}:")
            if w < 3:
                a(f"s_cmp_lg_u32 {self.sWave}, {w}")
                a(f"s_cbranch_scc1 {Lw[w + 1]}")
            n0 = a.lg_issued
            for o in range(4):
                if o == w:
                    continue
                d = (o - w - 1) % 4
                for q in range(4):
                    a(f"ds_write_b128 {vXw}, {blk(o)[4 * q:4 * q + 4]} offset:{(d * 4 + q) * 1024}")
            for q in range(8):
                a(f"v_pk_add_f32 {own[2 * q:2 * q + 2]}, {blk(w)[2 * q:2 * q + 2]}, 0")
            if w < 3:
                a.lg_issued = n0
                a(f"s_branch {Lj}")
        a(f"{Lj}:")
        for nb in range(2):
            for sb in range(2):
                V.release(acc[nb][sb])
        vRd = [V.alloc() for _ in range(3)]
        for j in range(3):
            a(f"s_add_u32 {t[0]}, {self.sWave}, {1 + j}")
            a(f"s_and_b32 {t[0]}, {t[0]}, 3")
            a(f"s_mul_i32 {t[0]}, {t[0]}, {REGION}")
            a(f"s_add_u32 {t[0]}, {t[0]}, {((2 - j) % 4) * 4096}")
            a(f"v_add_u32 {vRd[j]}, {t[0]}, {vQ}")
        a.wait(lg=a.ltok())
        a("s_barrier")
        rd = [V.alloc(16) for _ in range(3)]
        rtok = []
        for j in range(3):
            for q in range(4):
                a(f"ds_read_b128 {rd[j][4 * q:4 * q + 4]}, {vRd[j]} offset:{q * 1024}")
            rtok.append(a.ltok())
        a.wait(vm=xtok)
        a(f"v_lshlrev_b32 {vb2}, 16, {vb2}")
        b2p = V.alloc(2)
        a(f"v_mov_b32 {b2p[0]}, {vb2}")
        for q in range(8):
            a(f"v_pk_add_f32 {own[2 * q:2 * q + 2]}, {own[2 * q:2 * q + 2]}, {b2p} op_sel_hi:[1,0]")
        for j in range(3):
            a.wait(lg=rtok[j])
            for q in range(8):
                a(f"v_pk_add_f32 {own[2 * q:2 * q + 2]}, {own[2 * q:2 * q + 2]}, {rd[j][2 * q:2 * q + 2]}")
        for p in range(2):
            for j in range(4):
                a(f"v_permlane32_swap_b32 {own[8 * p + j]}, {own[8 * p + 4 + j]}")
        xs = rd[0]
        for p in range(2):
            for j in range(4):
                a(f"v_lshlrev_b32 {xs[8 * p + 2 * j]}, 16, {xres[4 * p + j]}")
                a(f"v_and_b32 {xs[8 * p + 2 * j + 1]}, 0xffff0000, {xres[4 * p + j]}")
        for p in range(2):
            for q in range(4):
                a(f"v_pk_add_f32 {own[8 * p + 2 * q:8 * p + 2 * q + 2]}, {own[8 * p + 2 * q:8 * p + 2 * q + 2]}, {xs[8 * p + 2 * q:8 * p + 2 * q + 2]}")
            for q in range(4):
                a(f"v_cvt_pk_bf16_f32 {own[8 * p + q]}, {own[8 * p + 2 * q]}, {own[8 * p + 2 * q + 1]}")
            a(f"buffer_store_dwordx4 {own[8 * p:8 * p + 4]}, {vO}, {self.srdO}, {t[2]} offen offset:{32 * p}")
        self.stamp()

    def code_prefetch(self):
        pass

    def kernel_head(self, name):
        self.a(f".globl {name}\n.p2align 8\n.type {name},@function\n{name}:")

    def build(self):
        a, cfg = self.a, self.cfg
        kernels = []
        if cfg.fused:
            name = NAME + '_kernel'
            kernels.append(name)
            self.kernel_head(name)
            self.prologue('END')
            self.stamp()
            a(f"s_cmp_ge_u32 {self.sQ}, 16")
            a("s_cbranch_scc1 QROLE")
            import copy
            st = (copy.deepcopy(self.V), copy.deepcopy(self.A), self.nstamp, a.vm_issued, a.vm_done, a.lg_issued, a.lg_done)
            self.p_block()
            self.s2_block()
            self.flush_stamps()
            a("s_endpgm")
            a("QROLE:")
            self.V, self.A, self.nstamp, a.vm_issued, a.vm_done, a.lg_issued, a.lg_done = st
            self.q_block()
            self.s2_block()
            self.flush_stamps()
            a("END:")
            a("s_endpgm")
        else:
            kernels = ['ln_kernel', 'st1_kernel', 'st2_kernel']
            self.kernel_head(kernels[0])
            self.nstamp = 0
            self.prologue('END0')
            self.stamp()
            self.ln_load()
            self.ln_compute(36864, REGION, 39936)
            self.ln_publish()
            self.flush_stamps(0)
            a("END0:")
            a("s_endpgm")
            a.reset_counters()
            self.kernel_head(kernels[1])
            self.nstamp = 0
            self.prologue('END1')
            self.stamp()
            a(f"s_cmp_ge_u32 {self.sQ}, 16")
            a("s_cbranch_scc1 QROLE")
            import copy
            st = (copy.deepcopy(self.V), copy.deepcopy(self.A), self.nstamp, a.vm_issued, a.vm_done, a.lg_issued, a.lg_done)
            self.p_block()
            self.flush_stamps(1)
            a("s_endpgm")
            a("QROLE:")
            self.V, self.A, self.nstamp, a.vm_issued, a.vm_done, a.lg_issued, a.lg_done = st
            self.q_block()
            self.flush_stamps(1)
            a("END1:")
            a("s_endpgm")
            a.reset_counters()
            self.kernel_head(kernels[2])
            self.nstamp = 0
            self.prologue('END2')
            self.stamp()
            self.s2_setup()
            self.vH = self.V.alloc()
            x = self.V.alloc()
            a(f"v_lshrrev_b32 {x}, 5, {self.vLane}")
            a(f"v_and_b32 {self.vH}, 31, {self.vLane}")
            a(f"v_lshlrev_b32 {self.vH}, 4, {self.vH}")
            a(f"v_lshl_add_u32 {self.vH}, {x}, 13, {self.vH}")
            self.V.release(x)
            self.srd(self.srdG, self.pWs, G_BYTES, add=WS_G)
            self.s2_block()
            self.flush_stamps(2)
            a("END2:")
            a("s_endpgm")
        body = a.finish()
        head = ["; parallel_sum__linear_attn_block__mixer_token_mlp__prompt: out = x + linattn(LN x) + mixer(LN x)",
                "; generated by work/gen.py (hand-written schedule, see the comments there)"]
        if cfg.fused:
            head.append("; @launch grid=(256,1,1) block=(256,1,1) lds=163840")
        else:
            for k in kernels:
                head.append(f"; @launch kernel={k} grid=(256,1,1) block=(256,1,1) lds=163840")
        head.append('.amdgcn_target "amdgcn-amd-amdhsa--gfx950"')
        head.append('.text')
        tail = ['.section .rodata,"a"']
        for k in kernels:
            tail.append(f""".p2align 6
.amdhsa_kernel {k}
  .amdhsa_next_free_vgpr 512
  .amdhsa_next_free_sgpr 102
  .amdhsa_accum_offset 256
  .amdhsa_group_segment_fixed_size 0
  .amdhsa_kernarg_size 88
  .amdhsa_user_sgpr_count 2
  .amdhsa_user_sgpr_kernarg_segment_ptr 1
  .amdhsa_system_sgpr_workgroup_id_x 1
.end_amdhsa_kernel""")
        return "\n".join(head) + "\n" + body + "\n" + "\n".join(tail) + "\n"


if __name__ == '__main__':
    cfg = Cfg()
    out = sys.argv[1]
    for kv in sys.argv[2:]:
        k, v = kv.split('=')
        setattr(cfg, k, int(v))
    g = Gen(cfg)
    txt = g.build()
    open(out, 'w').write(txt)
    print(f"wrote {out}: {len(txt)} bytes, {len(g.a.ins)} lines, {g.a.nops} pad states")
```

```python
import sys, struct, math
from asmlib import Asm, Pool, Reg

NAME = 'parallel_sum__linear_attn_block__mixer_token_mlp__prompt'

WS_HT = 0x000000
WS_G = 0x200000
G_BYTES = 172 * 8192
WS_PQ = 0x400000
WS_KVZ = 0x600000
WS_STAT = 0x610000
WS_F1 = 0x620000
WS_F2 = 0x630000
WS_TS = 0x700000
WS_SIZE = 0x800000

SPIN_MAX = 100000
REGION = 40960
LOG2E = 1.4426950408889634


def f32(x):
    return '0x%08x' % struct.unpack('<I', struct.pack('<f', x))[0]


class Cfg:
    fused = True
    stamps = False
    E = 8
    HN = 13
    code_prefetch = True


class Gen:
    def __init__(self, cfg):
        self.cfg = cfg
        self.a = Asm()
        self.nstamp = 0

    def new_pools(self):
        self.V = Pool('v', 256, reserved=[0, 255] if self.cfg.stamps else [0])
        self.A = Pool('a', 256)

    def srd(self, dst, ptr, size, add=0):
        a = self.a
        if add:
            a(f"s_add_u32 {dst[0]}, {ptr[0]}, {hex(add)}")
            a(f"s_addc_u32 {dst[1]}, {ptr[1]}, 0")
        else:
            a(f"s_mov_b32 {dst[0]}, {ptr[0]}")
            a(f"s_mov_b32 {dst[1]}, {ptr[1]}")
        a(f"s_mov_b32 {dst[2]}, {hex(size)}")
        a(f"s_mov_b32 {dst[3]}, 0x20000")

    def stamp(self):
        if self.cfg.stamps:
            k = self.nstamp
            self.nstamp += 1
            assert k < 32
            self.a("s_memrealtime s[76:77]" if self.cfg.stamps == 1 else "s_memtime s[76:77]")
            self.a("s_waitcnt lgkmcnt(0)")
            self.a(f"v_writelane_b32 v255, s76, {k}")
            self.a.lg_done = self.a.lg_issued

    def flush_stamps(self, kidx=0):
        if not self.cfg.stamps:
            return
        a = self.a
        a("s_waitcnt vmcnt(0) lgkmcnt(0)")
        a(f"s_lshl_b32 s3, s2, 2")
        a(f"s_add_u32 s3, s3, {self.sWave}")
        a(f"s_lshl_b32 s3, s3, 7")
        a(f"s_add_u32 s3, s3, {hex(WS_TS + kidx * 0x20000)}")
        a(f"v_lshlrev_b32 v1, 2, {self.vLane}")
        a("s_mov_b64 exec, 0xffffffff")
        a(f"buffer_store_dword v255, v1, {self.srdWS}, s3 offen")
        a("s_waitcnt vmcnt(0)")

    def prologue(self, endlabel):
        a = self.a
        self.new_pools()
        S = lambda lo, n=1: Reg('s', lo, n)
        self.pX, self.pWqkv, self.pWo, self.pW1 = S(4, 2), S(6, 2), S(8, 2), S(12, 2)
        self.pB1, self.pW2, self.pB2 = S(14, 2), S(16, 2), S(18, 2)
        self.pOut, self.pDbg, self.pWs = S(20, 2), S(22, 2), S(24, 2)
        self.srdX, self.srdW, self.srdWS, self.srdG = S(28, 4), S(32, 4), S(36, 4), S(40, 4)
        self.srdW2, self.srdWo, self.srdB, self.srdO = S(44, 4), S(48, 4), S(52, 4), S(56, 4)
        self.sWave, self.sXcd, self.sQ, self.sGrp = S(26), S(27), S(60), S(61)
        self.sNonce = S(62)
        self.sT = [S(63 + i) for i in range(9)]
        self.sP = S(72, 2)
        self.sP2 = S(74, 2)
        a(f"s_cmp_ge_u32 s2, 256")
        a(f"s_cbranch_scc1 {endlabel}")
        a("s_load_dwordx16 s[4:19], s[0:1], 0")
        a("s_load_dwordx4 s[20:23], s[0:1], 64")
        a("s_load_dwordx2 s[24:25], s[0:1], 80")
        self.vLane = self.V.alloc()
        a(f"v_lshrrev_b32 {self.vLane}, 6, v0")
        a(f"s_and_b32 {self.sXcd}, s2, 7")
        a(f"v_readfirstlane_b32 {self.sWave}, {self.vLane}")
        a(f"s_lshr_b32 {self.sQ}, s2, 3")
        a(f"v_and_b32 {self.vLane}, 63, v0")
        a(f"s_lshl_b32 {self.sGrp}, {self.sXcd}, 5")
        a(f"s_add_u32 {self.sGrp}, {self.sGrp}, {self.sQ}")
        a("s_waitcnt lgkmcnt(0)")
        self.srd(self.srdX, self.pX, 2048 * 1024)
        self.srd(self.srdWS, self.pWs, WS_SIZE)

    def ln_load(self):
        a, V = self.a, self.V
        self.vL16 = V.alloc()
        self.lnx = [V.alloc(4), V.alloc(4)]
        t = self.sT[0]
        a(f"v_lshlrev_b32 {self.vL16}, 4, {self.vLane}")
        a(f"s_lshl_b32 {t}, {self.sGrp}, 2")
        a(f"s_add_u32 {t}, {t}, {self.sWave}")
        a(f"s_lshl_b32 {t}, {t}, 11")
        a(f"buffer_load_dwordx4 {self.lnx[0]}, {self.vL16}, {self.srdX}, {t} offen")
        a(f"buffer_load_dwordx4 {self.lnx[1]}, {self.vL16}, {self.srdX}, {t} offen offset:1024")
        self.ln_tok = a.vtok()
        if self.cfg.fused:
            L = a.label('NOTAG')
            a(f"s_or_b32 {t}, s2, {self.sWave}")
            a(f"s_cmp_lg_u32 {t}, 0")
            a(f"s_cbranch_scc1 {L}")
            a(f"s_memrealtime {self.sP}")
            tmp = V.alloc(2)
            a(f"v_mov_b32 {tmp[0]}, 0")
            a("s_waitcnt lgkmcnt(0)")
            a(f"s_or_b32 {self.sP[0]}, {self.sP[0]}, 1")
            a(f"v_mov_b32 {tmp[1]}, {self.sP[0]}")
            n = a.vm_issued
            a(f"global_store_dword {tmp[0]}, {tmp[1]}, {self.pDbg} sc1")
            a.vm_issued = n
            a(f"{L}:")
            V.release(tmp)

    def reduce2(self, x, y):
        a = self.a
        a(f"v_permlane32_swap_b32 {x}, {y}")
        a(f"v_add_f32 {x}, {x}, {y}")
        for sh in (1, 2, 4, 8):
            a(f"v_add_f32_dpp {x}, {x}, {x} row_shr:{sh} row_mask:0xf bank_mask:0xf bound_ctrl:0")
        a(f"v_add_f32_dpp {x}, {x}, {x} row_bcast:15 row_mask:0xa bank_mask:0xf")

    def ln_compute(self, stg_base, stg_stride, stat_lds):
        a, V = self.a, self.V
        c = [V.alloc(8), V.alloc(8)]
        t = [V.alloc(4), V.alloc(4)]
        sMean, sR, sA = self.sP, self.sP2, Reg('s', 70, 2)
        vW, vR, vSt = V.alloc(), V.alloc(), V.alloc()
        tm = self.sT[0]
        a(f"v_lshrrev_b32 {vW}, 4, {self.vLane}")
        a(f"s_mov_b32 {tm}, {stg_stride}")
        a(f"v_mul_lo_u32 {vW}, {vW}, {tm}")
        a(f"v_and_b32 {vR}, 15, {self.vLane}")
        a(f"v_lshl_add_u32 {vW}, {vR}, 4, {vW}")
        a(f"s_mul_i32 {tm}, {self.sWave}, 640")
        a(f"s_add_u32 {tm}, {tm}, {stg_base}")
        a(f"v_add_u32 {vW}, {tm}, {vW}")
        a(f"v_lshrrev_b32 {vR}, 2, {vR}")
        a(f"v_mul_u32_u24 {vR}, 320, {vR}")
        a(f"v_lshrrev_b32 {vSt}, 4, {self.vLane}")
        a(f"v_lshl_add_u32 {vR}, {vSt}, 5, {vR}")
        a(f"v_and_b32 {vSt}, 3, {self.vLane}")
        a(f"v_lshl_add_u32 {vR}, {vSt}, 3, {vR}")
        a(f"s_mul_i32 {tm}, {self.sWave}, {stg_stride}")
        a(f"s_add_u32 {tm}, {tm}, {stg_base}")
        a(f"v_add_u32 {vR}, {tm}, {vR}")
        a(f"s_lshl_b32 {tm}, {self.sWave}, 3")
        a(f"s_add_u32 {tm}, {tm}, {stat_lds}")
        a(f"v_mov_b32 {vSt}, {tm}")
        a.wait(vm=self.ln_tok)
        self.stamp()
        for r in range(2):
            for j in range(4):
                a(f"v_lshlrev_b32 {c[r][2 * j]}, 16, {self.lnx[r][j]}")
                a(f"v_and_b32 {c[r][2 * j + 1]}, 0xffff0000, {self.lnx[r][j]}")
        for r in range(2):
            a(f"v_pk_add_f32 {t[r][0:2]}, {c[r][0:2]}, {c[r][2:4]}")
            a(f"v_pk_add_f32 {t[r][2:4]}, {c[r][4:6]}, {c[r][6:8]}")
        for r in range(2):
            a(f"v_pk_add_f32 {t[r][0:2]}, {t[r][0:2]}, {t[r][2:4]}")
        for r in range(2):
            a(f"v_add_f32 {t[r][0]}, {t[r][0]}, {t[r][1]}")
        self.reduce2(t[0][0], t[1][0])
        a(f"v_mul_f32 {t[0][0]}, {f32(1 / 512)}, {t[0][0]}")
        a(f"v_readlane_b32 {sMean[0]}, {t[0][0]}, 31")
        a(f"v_readlane_b32 {sMean[1]}, {t[0][0]}, 63")
        sel = ["op_sel:[0,0] op_sel_hi:[1,0]", "op_sel:[0,1] op_sel_hi:[1,1]"]
        for r in range(2):
            for j in range(4):
                a(f"v_pk_add_f32 {c[r][2 * j:2 * j + 2]}, {c[r][2 * j:2 * j + 2]}, {sMean} {sel[r]} neg_lo:[0,1] neg_hi:[0,1]")
        for r in range(2):
            a(f"v_pk_mul_f32 {t[r][0:2]}, {c[r][0:2]}, {c[r][0:2]}")
        for j in range(1, 4):
            for r in range(2):
                a(f"v_pk_fma_f32 {t[r][0:2]}, {c[r][2 * j:2 * j + 2]}, {c[r][2 * j:2 * j + 2]}, {t[r][0:2]}")
        for r in range(2):
            a(f"v_add_f32 {t[r][0]}, {t[r][0]}, {t[r][1]}")
        self.reduce2(t[0][0], t[1][0])
        var, r1, u, aa = t[0][0], t[0][1], t[0][2], t[0][3]
        eps = t[1][0]
        a(f"v_mov_b32 {eps}, {f32(1e-5)}")
        a(f"v_mul_f32 {var}, {f32(1 / 512)}, {var}")
        a(f"v_add_f32 {r1}, {var}, {eps}")
        a(f"v_rsq_f32 {r1}, {r1}")
        a(f"v_mul_f32 {u}, {var}, {r1}")
        a(f"v_fma_f32 {u}, {u}, {r1}, {eps}")
        a(f"v_rsq_f32 {u}, {u}")
        a(f"v_mul_f32 {aa}, {u}, {r1}")
        a(f"v_readlane_b32 {sR[0]}, {r1}, 31")
        a(f"v_readlane_b32 {sR[1]}, {r1}, 63")
        a(f"v_readlane_b32 {sA[0]}, {aa}, 31")
        a(f"v_readlane_b32 {sA[1]}, {aa}, 63")
        for r in range(2):
            for j in range(4):
                a(f"v_pk_mul_f32 {c[r][2 * j:2 * j + 2]}, {c[r][2 * j:2 * j + 2]}, {sA} {sel[r]}")
        for r in range(2):
            for j in range(4):
                a(f"v_cvt_pk_bf16_f32 {self.lnx[r][j]}, {c[r][2 * j]}, {c[r][2 * j + 1]}")
            a(f"ds_write_b128 {vW}, {self.lnx[r]} offset:{320 * r}")
        a(f"v_mov_b32 {t[0][0]}, {sMean[0]}")
        a(f"v_mov_b32 {t[0][1]}, {sMean[1]}")
        a(f"v_mov_b32 {t[0][2]}, {sR[0]}")
        a(f"v_mov_b32 {t[0][3]}, {sR[1]}")
        a(f"ds_write_b64 {vSt}, {t[0][0:2]}")
        a(f"ds_write_b64 {vSt}, {t[0][2:4]} offset:32")
        ntok = None
        if self.cfg.fused:
            a(f"v_mov_b32 {vW}, 0")
            a(f"global_load_dword {t[1][1]}, {vW}, {self.pDbg} sc1")
            ntok = a.vtok()
        a.wait(lg=a.ltok())
        a("s_barrier")
        for j in range(2):
            a(f"ds_read_b64_tr_b16 {c[j][0:2]}, {vR} offset:{128 * j}")
            a(f"ds_read_b64_tr_b16 {c[j][2:4]}, {vR} offset:{128 * j + 1280}")
        a(f"v_and_b32 {vSt}, 3, {self.vLane}")
        a(f"v_lshlrev_b32 {vSt}, 4, {vSt}")
        a(f"ds_read_b128 {t[0]}, {vSt} offset:{stat_lds}" if stat_lds < 65536 else
          f"v_add_u32 {vW}, {stat_lds}, {vSt}\nds_read_b128 {t[0]}, {vW}")
        s0, s1 = self.sT[0], self.sT[1]
        a(f"s_lshl_b32 {s0}, {self.sGrp}, 13")
        a(f"s_lshl_b32 {s1}, {self.sWave}, 11")
        a(f"s_add_u32 {s0}, {s0}, {s1}")
        a(f"s_lshl_b32 {s1}, {self.sGrp}, 6")
        a(f"s_add_u32 {s1}, {s1}, {hex(WS_STAT)}")
        a.wait(lg=a.ltok())
        a(f"buffer_store_dwordx4 {c[0][0:4]}, {self.vL16}, {self.srdWS}, {s0} offen sc1")
        a(f"buffer_store_dwordx4 {c[1][0:4]}, {self.vL16}, {self.srdWS}, {s0} offen offset:1024 sc1")
        a("s_mov_b64 exec, 0xf")
        a(f"buffer_store_dwordx4 {t[0]}, {vSt}, {self.srdWS}, {s1} offen sc1")
        a("s_mov_b64 exec, -1")
        L = a.label('NOZERO')
        a(f"s_or_b32 {s0}, {self.sQ}, {self.sWave}")
        a(f"s_cmp_lg_u32 {s0}, 0")
        a(f"s_cbranch_scc1 {L}")
        n = a.vm_issued
        for j in range(4):
            a(f"v_mov_b32 {c[0][4 + j]}, 0")
        a(f"s_mul_i32 {s0}, {self.sXcd}, 4352")
        a(f"s_add_u32 {s0}, {s0}, {hex(WS_KVZ)}")
        for j in range(4):
            a(f"buffer_store_dwordx4 {c[0][4:8]}, {self.vL16}, {self.srdWS}, {s0} offen offset:{1024 * j} sc1")
        a(f"s_add_u32 {s0}, {s0}, 4096")
        a("s_mov_b64 exec, 0xffff")
        a(f"buffer_store_dwordx4 {c[0][4:8]}, {self.vL16}, {self.srdWS}, {s0} offen sc1")
        a("s_mov_b64 exec, -1")
        a.vm_issued = n
        a(f"{L}:")
        self.ln_store_tok = a.vtok()
        self.ln_tmp = (c, t, vW, vR, vSt)
        self.vNonce = t[1][1]

    def ln_publish(self):
        a, V = self.a, self.V
        c, t, vW, vR, vSt = self.ln_tmp
        if self.cfg.fused:
            a.wait(vm=self.ln_store_tok, force=True)
            L, L2 = a.label('TAG'), a.label('TAGOK')
            a(f"v_readfirstlane_b32 {self.sNonce}, {self.vNonce}")
            a(f"v_mov_b32 {vW}, 0")
            a(f"s_cmp_lg_u32 {self.sNonce}, 0")
            a(f"s_cbranch_scc1 {L2}")
            a(f"s_mov_b32 s3, 0")
            a(f"{L}:")
            n = a.vm_issued
            a("s_add_u32 s3, s3, 1")
            a(f"s_cmp_gt_u32 s3, {SPIN_MAX}")
            a(f"s_cbranch_scc1 {L2}")
            a(f"global_load_dword {self.vNonce}, {vW}, {self.pDbg} sc1")
            a.vm_issued = n
            a("s_waitcnt vmcnt(0)")
            a(f"v_readfirstlane_b32 {self.sNonce}, {self.vNonce}")
            a(f"s_cmp_eq_u32 {self.sNonce}, 0")
            a(f"s_cbranch_scc1 {L}")
            a(f"{L2}:")
            s0 = self.sT[0]
            a(f"s_lshl_b32 {s0}, {self.sWave}, 8")
            a(f"s_add_u32 {s0}, {s0}, {self.sGrp}")
            a(f"s_lshl_b32 {s0}, {s0}, 6")
            a(f"s_add_u32 {s0}, {s0}, {hex(WS_F1)}")
            a(f"v_mov_b32 {self.vNonce}, {self.sNonce}")
            a("s_mov_b64 exec, 1")
            a(f"buffer_store_dword {self.vNonce}, {vW}, {self.srdWS}, {s0} offen sc1")
            a("s_mov_b64 exec, -1")
        for r in c + t + [vW, vR, vSt] + self.lnx:
            V.release(r)
        self.stamp()

    def poll_issue(self, voff, soff):
        a = self.a
        v = self.V.alloc()
        a(f"buffer_load_dword {v}, {voff}, {self.srdWS}, {soff} offen sc1")
        return v, a.vtok()

    def poll_check(self, v, tok, voff, soff):
        a = self.a
        L, L2 = a.label('POLL'), a.label('POLLOK')
        a.wait(vm=tok)
        a(f"v_cmp_ne_u32 vcc, {self.sNonce}, {v}")
        a(f"s_cbranch_vccz {L2}")
        a(f"s_mov_b32 s3, 0")
        a(f"{L}:")
        n = a.vm_issued
        a("s_add_u32 s3, s3, 1")
        a(f"s_cmp_gt_u32 s3, {SPIN_MAX}")
        a(f"s_cbranch_scc1 {L2}")
        a("s_sleep 2")
        a(f"buffer_load_dword {v}, {voff}, {self.srdWS}, {soff} offen sc1")
        a.vm_issued = n
        a("s_waitcnt vmcnt(0)")
        a(f"v_cmp_ne_u32 vcc, {self.sNonce}, {v}")
        a(f"s_cbranch_vccnz {L}")
        a(f"{L2}:")
        self.V.release(v)

    def s2_setup(self):
        a, V = self.a, self.V
        self.sSt, self.sNt = Reg('s', 100), Reg('s', 101)
        t = self.sT
        a(f"s_lshr_b32 {t[0]}, {self.sXcd}, 1")
        a(f"s_lshl_b32 {t[0]}, {t[0]}, 3")
        a(f"s_and_b32 {t[1]}, {self.sQ}, 7")
        a(f"s_add_u32 {self.sSt}, {t[0]}, {t[1]}")
        a(f"s_and_b32 {t[0]}, {self.sXcd}, 1")
        a(f"s_lshl_b32 {t[0]}, {t[0]}, 2")
        a(f"s_lshr_b32 {t[1]}, {self.sQ}, 3")
        a(f"s_add_u32 {self.sNt}, {t[0]}, {t[1]}")
        self.srd(self.srdW2, self.pW2, 1376 * 4096)
        self.srd(self.srdWo, self.pWo, 512 * 1024)
        self.vS2w2 = [V.alloc(), V.alloc()]
        self.vS2wo = [V.alloc(), V.alloc()]
        self.vS2tr = [V.alloc(), V.alloc()]
        x, y = self.vS2tr
        a(f"v_lshrrev_b32 {x}, 2, {self.vLane}")
        a(f"v_and_b32 {x}, 4, {x}")
        a(f"v_xor_b32 {x}, {x}, {self.vLane}")
        a(f"v_and_b32 {x}, 7, {x}")
        a(f"v_lshlrev_b32 {x}, 4, {x}")
        a(f"v_lshrrev_b32 {y}, 3, {self.vLane}")
        a(f"v_lshl_add_u32 {self.vS2w2[0]}, {y}, 12, {x}")
        a(f"v_add_u32 {self.vS2w2[1]}, {8 * 4096 - 1024}, {self.vS2w2[0]}")
        a(f"v_lshl_add_u32 {self.vS2wo[0]}, {y}, 10, {x}")
        a(f"v_add_u32 {self.vS2wo[1]}, {8 * 1024 - 1024}, {self.vS2wo[0]}")
        a(f"v_lshrrev_b32 {x}, 5, {self.vLane}")
        a(f"v_lshlrev_b32 {x}, 9, {x}")
        a(f"v_bfe_u32 {y}, {self.vLane}, 2, 2")
        a(f"v_lshl_add_u32 {x}, {y}, 7, {x}")
        a(f"v_bfe_u32 {y}, {self.vLane}, 4, 1")
        a(f"v_lshl_add_u32 {x}, {y}, 5, {x}")
        a(f"v_and_b32 {y}, 3, {self.vLane}")
        a(f"v_lshl_add_u32 {x}, {y}, 3, {x}")
        a(f"v_bfe_u32 {y}, {self.vLane}, 3, 1")
        a(f"v_lshl_add_u32 {x}, {y}, 6, {x}")
        self.sRing = Reg('s', 99)
        a(f"s_mul_i32 {self.sRing}, {self.sWave}, {REGION}")
        a(f"s_add_u32 {self.sRing}, {self.sRing}, 18432")
        a(f"v_add_u32 {x}, {self.sRing}, {x}")
        a(f"v_xor_b32 {y}, 64, {x}")
        self.sWoOff, self.sW2Off = Reg('s', 98), Reg('s', 97)
        a(f"s_lshl_b32 {self.sWoOff}, {self.sWave}, 17")
        a(f"s_lshl_b32 {t[0]}, {self.sNt}, 7")
        a(f"s_add_u32 {self.sWoOff}, {self.sWoOff}, {t[0]}")
        a(f"s_mul_i32 {self.sW2Off}, {self.sWave}, {22 * 16 * 4096}")
        a(f"s_lshl_b32 {t[0]}, {self.sSt}, 7")
        a(f"s_add_u32 {self.sW2Off}, {self.sW2Off}, {t[0]}")
        self.s2_n_dma = 0
        self.s2_n_park = 0
        self.s2_dtok = {}
        self.s2_ptok = {}
        self.s2_frag = {}

    S2_STEPS = 30
    S2_SLOTS = 11

    def s2_dma(self):
        a = self.a
        k = self.s2_n_dma
        if k >= self.S2_STEPS:
            return False
        if k >= self.S2_SLOTS:
            if k - self.S2_SLOTS >= self.s2_n_park:
                return False
            a.wait(lg=self.s2_ptok[k - self.S2_SLOTS])
        slot = k % self.S2_SLOTS
        a(f"s_add_u32 m0, {self.sRing}, {slot * 2048}")
        if k < 8:
            srd, vo, so, inc = self.srdWo, self.vS2wo, self.sWoOff, 16 * 1024
        else:
            srd, vo, so, inc = self.srdW2, self.vS2w2, self.sW2Off, 16 * 4096
        a(f"buffer_load_dwordx4 {vo[0]}, {srd}, {so} offen lds")
        a(f"buffer_load_dwordx4 {vo[1]}, {srd}, {so} offen offset:1024 lds")
        a(f"s_add_u32 {so}, {so}, {inc}")
        self.s2_dtok[k] = a.vtok()
        self.s2_n_dma += 1
        return True

    def s2_park(self):
        a = self.a
        k = self.s2_n_park
        if k >= self.s2_n_dma or not self.A.can(8, 4):
            return False
        a.wait(vm=self.s2_dtok[k])
        r = self.A.alloc(8, 4)
        slot = k % self.S2_SLOTS
        for b in range(2):
            a(f"ds_read_b64_tr_b16 {r[4 * b:4 * b + 2]}, {self.vS2tr[b]} offset:{slot * 2048}")
            a(f"ds_read_b64_tr_b16 {r[4 * b + 2:4 * b + 4]}, {self.vS2tr[b]} offset:{slot * 2048 + 1024}")
        self.s2_frag[k] = r
        self.s2_ptok[k] = a.ltok()
        self.s2_n_park += 1
        return True

    def p_block(self):
        a, V, A, cfg = self.a, self.V, self.A, self.cfg
        t = self.sT
        sFt, sDt, sW1, sReg = Reg('s', 96), Reg('s', 95), Reg('s', 94), Reg('s', 93)
        if cfg.fused:
            self.ln_load()
        a(f"s_lshr_b32 {t[0]}, {self.sQ}, 3")
        a(f"s_lshl_b32 {t[0]}, {t[0]}, 3")
        a(f"s_add_u32 {sFt}, {t[0]}, {self.sXcd}")
        a(f"s_and_b32 {sDt}, {self.sQ}, 7")
        self.srd(self.srdW, self.pW1, 2048 * 2752)
        vD = [V.alloc() for _ in range(3)]
        x, y = V.alloc(), V.alloc()
        for j in range(3):
            a(f"v_add_u32 {x}, {64 * j}, {self.vLane}")
            a(f"v_mul_u32_u24 {y}, 5462, {x}")
            a(f"v_lshrrev_b32 {y}, 16, {y}")
            a(f"v_mul_u32_u24 {vD[j]}, {2752 - 192}, {y}")
            a(f"v_lshl_add_u32 {vD[j]}, {x}, 4, {vD[j]}")
            if j:
                a(f"v_subrev_u32 {vD[j]}, {1024 * j}, {vD[j]}")
        a(f"s_mul_i32 {sW1}, {self.sWave}, {512 * 2752}")
        a(f"s_mul_i32 {t[0]}, {sFt}, 192")
        a(f"s_add_u32 {sW1}, {sW1}, {t[0]}")
        a(f"s_mul_i32 {sReg}, {self.sWave}, {REGION}")
        NS = 13
        dtok = {}
        st = {'dma': 0}

        def dma():
            k = st['dma']
            a(f"s_add_u32 m0, {sReg}, {(k % NS) * 3072}")
            for j in range(3):
                a(f"buffer_load_dwordx4 {vD[j]}, {self.srdW}, {sW1} offen offset:{1024 * j} lds")
            a(f"s_add_u32 {sW1}, {sW1}, {16 * 2752}")
            dtok[k] = a.vtok()
            st['dma'] += 1

        for k in range(cfg.E if cfg.fused else NS):
            dma()
        vT, vH = V.alloc(), V.alloc()
        a(f"v_lshrrev_b32 {x}, 5, {self.vLane}")
        a(f"v_bfe_u32 {y}, {self.vLane}, 2, 2")
        a(f"v_lshl_add_u32 {y}, {x}, 3, {y}")
        a(f"v_mul_u32_u24 {vT}, 192, {y}")
        a(f"v_bfe_u32 {y}, {self.vLane}, 4, 1")
        a(f"v_lshl_add_u32 {vT}, {y}, 5, {vT}")
        a(f"v_and_b32 {y}, 3, {self.vLane}")
        a(f"v_lshl_add_u32 {vT}, {y}, 3, {vT}")
        a(f"v_add_u32 {vT}, {sReg}, {vT}")
        a(f"v_and_b32 {y}, 31, {self.vLane}")
        a(f"v_lshlrev_b32 {y}, 4, {y}")
        a(f"v_lshl_add_u32 {vH}, {x}, 13, {y}")
        self.vH = vH
        self.srd(self.srdB, self.pB1, 1376 * 2)
        bias = [V.alloc(4) for _ in range(3)]
        a(f"v_lshlrev_b32 {y}, 3, {x}")
        for i in range(3):
            a(f"s_mul_i32 {t[0]}, {self.sWave}, 3")
            a(f"s_add_u32 {t[0]}, {t[0]}, {i}")
            a(f"s_lshr_b32 {t[0]}, {t[0]}, 1")
            a(f"s_lshl_b32 {t[0]}, {t[0]}, 5")
            a(f"s_mul_i32 {t[1]}, {sFt}, 192")
            a(f"s_add_u32 {t[0]}, {t[0]}, {t[1]}")
            a(f"buffer_load_dwordx2 {bias[i][0:2]}, {y}, {self.srdB}, {t[0]} offen")
            a(f"buffer_load_dwordx2 {bias[i][2:4]}, {y}, {self.srdB}, {t[0]} offen offset:16")
        V.release(x)
        V.release(y)
        if cfg.fused:
            self.code_prefetch()
            self.ln_compute(36864, REGION, 39936)
            while st['dma'] < NS:
                dma()
            self.ln_publish()
            self.s2_setup()
        self.srd(self.srdG, self.pWs, G_BYTES, add=WS_G)

        def tr_reads(dst, k):
            for b in range(3):
                a(f"ds_read_b64_tr_b16 {dst[4 * b:4 * b + 2]}, {vT} offset:{(k % NS) * 3072 + 64 * b}")
                a(f"ds_read_b64_tr_b16 {dst[4 * b + 2:4 * b + 4]}, {vT} offset:{(k % NS) * 3072 + 64 * b + 768}")

        NPARK = 20
        park = []
        ptok = {}
        for k in range(NPARK):
            a.wait(vm=dtok[k])
            r = A.alloc(12, 4)
            park.append(r)
            tr_reads(r, k)
            ptok[k] = a.ltok()
            if k >= 1 and st['dma'] < 32:
                a.wait(lg=ptok[k - 1])
                dma()
        assert st['dma'] == 32
        self.stamp()
        acc = [[V.alloc(16) for db in range(2)] for b in range(3)]
        order = list(range(20, 32)) + list(range(20))
        sH = Reg('s', 92)
        a(f"s_lshl_b32 {sH}, {self.sWave}, 19")
        a(f"s_lshl_b32 {t[0]}, {sDt}, 10")
        a(f"s_add_u32 {sH}, {sH}, {t[0]}")
        if cfg.fused:
            vP = V.alloc()
            a(f"v_lshlrev_b32 {vP}, 6, {self.vLane}")
            a(f"s_lshr_b32 {t[0]}, {sDt}, 1")
            a(f"s_lshl_b32 {t[0]}, {t[0]}, 2")
            a(f"s_add_u32 {t[0]}, {t[0]}, {self.sWave}")
            a(f"s_lshl_b32 {t[0]}, {t[0]}, 12")
            a(f"s_add_u32 {t[0]}, {t[0]}, {hex(WS_F1)}")
            pv, ptk = self.poll_issue(vP, t[0])
            self.poll_check(pv, ptk, vP, t[0])
            V.release(vP)
        self.stamp()
        HN = cfg.HN
        hreg = [V.alloc(8, 4) for _ in range(HN)]
        htok = {}

        def hload(n):
            k = order[n]
            r = hreg[n % HN]
            a(f"s_add_u32 {t[2]}, {sH}, {k * 16384}")
            a(f"buffer_load_dwordx4 {r[0:4]}, {vH}, {self.srdWS}, {t[2]} offen sc1")
            a(f"buffer_load_dwordx4 {r[4:8]}, {vH}, {self.srdWS}, {t[2]} offen offset:512 sc1")
            htok[n] = a.vtok()

        for n in range(HN):
            hload(n)
        wtmp = [V.alloc(12, 4), V.alloc(12, 4)]
        a.wait(vm=dtok[31])
        tr_reads(wtmp[0], order[0])
        wtok = {0: a.ltok()}
        for n in range(32):
            k = order[n]
            if n + 1 < 12:
                tr_reads(wtmp[(n + 1) % 2], order[n + 1])
                wtok[n + 1] = a.ltok()
            if n < 12:
                a.wait(vm=htok[n], lg=wtok[n])
                w = wtmp[n % 2]
            else:
                a.wait(vm=htok[n], lg=ptok[k])
                w = park[k]
            h = hreg[n % HN]
            for b in range(3):
                for db in range(2):
                    c = acc[b][db] if n else '0'
                    a(f"v_mfma_f32_32x32x16_bf16 {acc[b][db]}, {w[4 * b:4 * b + 4]}, {h[4 * db:4 * db + 4]}, {c}")
            if n + HN < 32:
                hload(n + HN)
            if n >= 12:
                A.release(park[k])
            if cfg.fused and n >= 7:
                self.s2_park()
                self.s2_dma()
        for r in hreg + wtmp + vD + [vT]:
            V.release(r)
        self.stamp()
        unit = lambda u: acc[u >> 2][u & 1][8 * ((u >> 1) & 1):8 * ((u >> 1) & 1) + 8]
        vX = V.alloc()
        a(f"v_lshlrev_b32 {vX}, 4, {self.vLane}")
        vXw = V.alloc()
        a(f"v_add_u32 {vXw}, {sReg}, {vX}")
        Lw = [a.label('XW') for _ in range(4)]
        Lj = a.label('XJ')
        own = V.alloc(24, 4)
        for w in range(4):
            a(f"{Lw[w]}:")
            if w < 3:
                a(f"s_cmp_lg_u32 {self.sWave}, {w}")
                a(f"s_cbranch_scc1 {Lw[w + 1]}")
            n0 = a.lg_issued
            for o in range(4):
                if o == w:
                    continue
                d = (o - w - 1) % 4
                for i in range(3):
                    for q in range(2):
                        a(f"ds_write_b128 {vXw}, {unit(3 * o + i)[4 * q:4 * q + 4]} offset:{(d * 6 + i * 2 + q) * 1024}")
            for i in range(3):
                for q in range(4):
                    a(f"v_pk_add_f32 {own[8 * i + 2 * q:8 * i + 2 * q + 2]}, {unit(3 * w + i)[2 * q:2 * q + 2]}, 0")
            if w < 3:
                a.lg_issued = n0
                a(f"s_branch {Lj}")
        a(f"{Lj}:")
        for b in range(3):
            for db in range(2):
                V.release(acc[b][db])
        vRd = [V.alloc() for _ in range(3)]
        for j in range(3):
            a(f"s_add_u32 {t[0]}, {self.sWave}, {1 + j}")
            a(f"s_and_b32 {t[0]}, {t[0]}, 3")
            a(f"s_mul_i32 {t[0]}, {t[0]}, {REGION}")
            a(f"s_add_u32 {t[0]}, {t[0]}, {((2 - j) % 4) * 6144}")
            a(f"v_add_u32 {vRd[j]}, {t[0]}, {vX}")
        a.wait(lg=a.ltok())
        a("s_barrier")
        rd = [V.alloc(24, 4) for _ in range(3)]
        rtok = []
        for i in range(3):
            for j in range(3):
                for q in range(2):
                    a(f"ds_read_b128 {rd[j][8 * i + 4 * q:8 * i + 4 * q + 4]}, {vRd[j]} offset:{(i * 2 + q) * 1024}")
            rtok.append(a.ltok())
        c0 = -2.0 * math.sqrt(2.0 / math.pi) * LOG2E
        sC = self.sP
        a(f"s_mov_b32 {sC[0]}, {f32(c0 * 0.044715)}")
        a(f"s_mov_b32 {sC[1]}, {f32(c0)}")
        vC0 = V.alloc(2)
        a(f"v_mov_b32 {vC0[0]}, {sC[1]}")
        a(f"v_mov_b32 {vC0[1]}, {sC[1]}")
        tb = V.alloc(8, 4)
        for i in range(3):
            u = own[8 * i:8 * i + 8]
            for j in range(4):
                a(f"v_lshlrev_b32 {tb[2 * j]}, 16, {bias[i][j]}")
                a(f"v_and_b32 {tb[2 * j + 1]}, 0xffff0000, {bias[i][j]}")
            if i == 0:
                a.wait(vm=a.vm_done)
            for q in range(4):
                a(f"v_pk_add_f32 {u[2 * q:2 * q + 2]}, {u[2 * q:2 * q + 2]}, {tb[2 * q:2 * q + 2]}")
            a.wait(lg=rtok[i])
            for j in range(3):
                for q in range(4):
                    a(f"v_pk_add_f32 {u[2 * q:2 * q + 2]}, {u[2 * q:2 * q + 2]}, {rd[j][8 * i + 2 * q:8 * i + 2 * q + 2]}")
            for q in range(4):
                a(f"v_pk_mul_f32 {tb[2 * q:2 * q + 2]}, {u[2 * q:2 * q + 2]}, {u[2 * q:2 * q + 2]}")
            for q in range(4):
                a(f"v_pk_fma_f32 {tb[2 * q:2 * q + 2]}, {tb[2 * q:2 * q + 2]}, {sC}, {vC0} op_sel_hi:[1,0,1]")
            for q in range(4):
                a(f"v_pk_mul_f32 {tb[2 * q:2 * q + 2]}, {tb[2 * q:2 * q + 2]}, {u[2 * q:2 * q + 2]}")
            for q in range(8):
                a(f"v_exp_f32 {tb[q]}, {tb[q]}")
            for q in range(4):
                a(f"v_pk_add_f32 {tb[2 * q:2 * q + 2]}, {tb[2 * q:2 * q + 2]}, 1.0 op_sel_hi:[1,0]")
            for q in range(8):
                a(f"v_rcp_f32 {tb[q]}, {tb[q]}")
            for q in range(4):
                a(f"v_pk_mul_f32 {u[2 * q:2 * q + 2]}, {u[2 * q:2 * q + 2]}, {tb[2 * q:2 * q + 2]}")
            for q in range(4):
                a(f"v_cvt_pk_bf16_f32 {u[q]}, {u[2 * q]}, {u[2 * q + 1]}")
            a(f"s_mul_i32 {t[0]}, {self.sWave}, 3")
            a(f"s_add_u32 {t[0]}, {t[0]}, {i}")
            a(f"s_and_b32 {t[1]}, {t[0]}, 1")
            a(f"s_lshl_b32 {t[1]}, {t[1]}, 9")
            a(f"s_lshr_b32 {t[0]}, {t[0]}, 1")
            a(f"s_mul_i32 {t[2]}, {sFt}, 6")
            a(f"s_add_u32 {t[0]}, {t[0]}, {t[2]}")
            a(f"s_lshl_b32 {t[0]}, {t[0]}, 14")
            a(f"s_add_u32 {t[0]}, {t[0]}, {t[1]}")
            a(f"s_lshl_b32 {t[1]}, {sDt}, 10")
            a(f"s_add_u32 {t[0]}, {t[0]}, {t[1]}")
            a(f"buffer_store_dwordx4 {u[0:4]}, {vH}, {self.srdG}, {t[0]} offen sc1")
        gtok = a.vtok()
        for r in rd + vRd + bias + [tb, vC0, vXw]:
            V.release(r)
        self.stamp()
        if cfg.fused:
            for _ in range(3):
                self.s2_park()
                self.s2_dma()
            a.wait(vm=gtok)
            a(f"s_lshl_b32 {t[0]}, {sDt}, 4")
            a(f"s_add_u32 {t[0]}, {t[0]}, {sFt}")
            a(f"s_lshl_b32 {t[0]}, {t[0]}, 2")
            a(f"s_add_u32 {t[0]}, {t[0]}, {self.sWave}")
            a(f"s_lshl_b32 {t[0]}, {t[0]}, 6")
            a(f"s_add_u32 {t[0]}, {t[0]}, {hex(WS_F2)}")
            a(f"v_mov_b32 {own[4]}, {self.sNonce}")
            a(f"v_mov_b32 {own[5]}, 0")
            a("s_mov_b64 exec, 1")
            a(f"buffer_store_dword {own[4]}, {own[5]}, {self.srdWS}, {t[0]} offen sc1")
            a("s_mov_b64 exec, -1")
        V.release(own)
        V.release(vX)

    def q_block(self):
        a, V, A, cfg = self.a, self.V, self.A, self.cfg
        t = self.sT
        sRt, sCg, sXo, sWo = Reg('s', 96), Reg('s', 95), Reg('s', 94), Reg('s', 93)
        sRh, sHp = Reg('s', 92), Reg('s', 91)
        if cfg.fused:
            self.ln_load()
        a(f"s_lshr_b32 {t[0]}, {self.sXcd}, 1")
        a(f"s_lshl_b32 {t[0]}, {t[0]}, 2")
        a(f"s_and_b32 {t[1]}, {self.sQ}, 3")
        a(f"s_add_u32 {sRt}, {t[0]}, {t[1]}")
        a(f"s_and_b32 {t[0]}, {self.sXcd}, 1")
        a(f"s_lshl_b32 {t[0]}, {t[0]}, 2")
        a(f"s_bfe_u32 {t[1]}, {self.sQ}, 0x20002")
        a(f"s_add_u32 {sCg}, {t[0]}, {t[1]}")
        a(f"s_and_b32 {sRh}, {self.sWave}, 1")
        a(f"s_lshr_b32 {sHp}, {self.sWave}, 1")
        self.srd(self.srdW, self.pWqkv, 512 * 3072)
        vDx = [V.alloc() for _ in range(4)]
        vDw = [V.alloc() for _ in range(2)]
        x, y = V.alloc(), V.alloc()
        a(f"v_lshrrev_b32 {x}, 4, {self.vLane}")
        a(f"v_xor_b32 {x}, {x}, {self.vLane}")
        a(f"v_and_b32 {x}, 7, {x}")
        a(f"v_lshlrev_b32 {x}, 4, {x}")
        a(f"v_lshrrev_b32 {y}, 3, {self.vLane}")
        a(f"v_lshl_add_u32 {vDx[0]}, {y}, 10, {x}")
        a(f"v_xor_b32 {vDx[1]}, 64, {vDx[0]}")
        a(f"v_add_u32 {vDx[1]}, {8192 - 1024}, {vDx[1]}")
        a(f"v_add_u32 {vDx[2]}, {2 * (8192 - 1024)}, {vDx[0]}")
        a(f"v_add_u32 {vDx[3]}, {2 * (8192 - 1024)}, {vDx[1]}")
        a(f"v_lshrrev_b32 {x}, 2, {self.vLane}")
        a(f"v_and_b32 {x}, 4, {x}")
        a(f"v_xor_b32 {x}, {x}, {self.vLane}")
        a(f"v_and_b32 {x}, 7, {x}")
        a(f"v_lshlrev_b32 {x}, 4, {x}")
        a(f"v_mul_u32_u24 {vDw[0]}, 3072, {y}")
        a(f"v_add_u32 {vDw[0]}, {vDw[0]}, {x}")
        a(f"v_add_u32 {vDw[1]}, {8 * 3072 - 1024}, {vDw[0]}")
        a(f"s_lshl_b32 {sXo}, {sRt}, 2")
        a(f"s_add_u32 {sXo}, {sXo}, {self.sWave}")
        a(f"s_lshl_b32 {sXo}, {sXo}, 15")
        a(f"s_mul_i32 {sWo}, {self.sWave}, {16 * 3072}")
        a(f"s_lshl_b32 {t[0]}, {sCg}, 7")
        a(f"s_add_u32 {sWo}, {sWo}, {t[0]}")
        sMx, sMw = Reg('s', 90), Reg('s', 89)
        a(f"s_lshl_b32 {sMx}, {self.sWave}, 12")
        a(f"s_lshl_b32 {sMw}, {self.sWave}, 11")
        a(f"s_add_u32 {sMw}, {sMw}, 16384")
        dtok = {}

        def dma(s):
            base = (s % 4) * REGION
            a(f"s_add_u32 m0, {sMx}, {base}")
            for i in range(4):
                a(f"buffer_load_dwordx4 {vDx[i]}, {self.srdX}, {sXo} offen offset:{1024 * i} lds")
            a(f"s_add_u32 {sXo}, {sXo}, 128")
            for seg in range(3):
                a(f"s_add_u32 m0, {sMw}, {base + seg * 8192}")
                a(f"s_add_u32 {t[3]}, {sWo}, {seg * 1024}")
                for o in range(2):
                    a(f"buffer_load_dwordx4 {vDw[o]}, {self.srdW}, {t[3]} offen offset:{1024 * o} lds")
            a(f"s_add_u32 {sWo}, {sWo}, {64 * 3072}")
            dtok[s] = a.vtok()

        for s in range(3):
            dma(s)
        vRx = [V.alloc() for _ in range(4)]
        vRw = V.alloc()
        a(f"v_and_b32 {x}, 31, {self.vLane}")
        a(f"v_lshlrev_b32 {y}, 7, {x}")
        a(f"s_lshl_b32 {t[0]}, {sRh}, 13")
        a(f"v_add_u32 {y}, {t[0]}, {y}")
        a(f"v_bfe_u32 {x}, {self.vLane}, 1, 3")
        a(f"v_lshrrev_b32 {vRw}, 5, {self.vLane}")
        a(f"v_xor_b32 {x}, {x}, {vRw}")
        for kk in range(4):
            a(f"v_xor_b32 {vRx[kk]}, {2 * kk}, {x}")
            a(f"v_lshl_add_u32 {vRx[kk]}, {vRx[kk]}, 4, {y}")
        a(f"v_lshlrev_b32 {vRw}, 10, {vRw}")
        a(f"v_bfe_u32 {x}, {self.vLane}, 2, 2")
        a(f"v_lshl_add_u32 {vRw}, {x}, 7, {vRw}")
        a(f"v_bfe_u32 {x}, {self.vLane}, 4, 1")
        a(f"v_lshl_add_u32 {vRw}, {x}, 5, {vRw}")
        a(f"v_and_b32 {x}, 3, {self.vLane}")
        a(f"v_lshl_add_u32 {vRw}, {x}, 3, {vRw}")
        a(f"v_bfe_u32 {x}, {self.vLane}, 3, 1")
        a(f"v_xor_b32 {x}, {sHp}, {x}")
        a(f"v_lshl_add_u32 {vRw}, {x}, 6, {vRw}")
        a(f"v_add_u32 {vRw}, 16384, {vRw}")
        ones = V.alloc(4)
        for j in range(4):
            a(f"v_mov_b32 {ones[j]}, 0x3f803f80")
        V.release(x)
        V.release(y)
        if cfg.fused:
            self.code_prefetch()
            self.ln_compute(3 * REGION, 4096, 3 * REGION + 16384)
            self.ln_publish()
            self.s2_setup()
        Dq = [V.alloc(16), V.alloc(16)]
        Dk = [V.alloc(16), V.alloc(16)]
        Dv = [V.alloc(16), V.alloc(16)]
        Cq, Ck, Cv = V.alloc(16), V.alloc(16), V.alloc(16)
        fx = [V.alloc(8, 4), V.alloc(8, 4)]
        fw = [V.alloc(12, 4), V.alloc(12, 4)]
        slot_off = {'x': [0] * 4, 'w': 0}

        def reads(s, kk):
            base = (s % 4) * REGION
            b = (4 * s + kk) % 2
            if slot_off['x'][kk] != base:
                d = base - slot_off['x'][kk]
                a(f"v_add_u32 {vRx[kk]}, {d}, {vRx[kk]}" if d > 0 else f"v_subrev_u32 {vRx[kk]}, {-d}, {vRx[kk]}")
                slot_off['x'][kk] = base
            if slot_off['w'] != base:
                d = base - slot_off['w']
                a(f"v_add_u32 {vRw}, {d}, {vRw}" if d > 0 else f"v_subrev_u32 {vRw}, {-d}, {vRw}")
                slot_off['w'] = base
            for rb in range(2):
                a(f"ds_read_b128 {fx[b][4 * rb:4 * rb + 4]}, {vRx[kk]} offset:{4096 * rb}")
            for seg in range(3):
                a(f"ds_read_b64_tr_b16 {fw[b][4 * seg:4 * seg + 2]}, {vRw} offset:{seg * 8192 + kk * 2048}")
                a(f"ds_read_b64_tr_b16 {fw[b][4 * seg + 2:4 * seg + 4]}, {vRw} offset:{seg * 8192 + kk * 2048 + 512}")
            return a.ltok()

        def mfmas(n):
            b = n % 2
            z = lambda r: r if n else '0'
            M = "v_mfma_f32_32x32x16_bf16"
            for rb in range(2):
                xf = fx[b][4 * rb:4 * rb + 4]
                a(f"{M} {Dq[rb]}, {fw[b][0:4]}, {xf}, {z(Dq[rb])}")
                a(f"{M} {Dk[rb]}, {xf}, {fw[b][4:8]}, {z(Dk[rb])}")
                a(f"{M} {Dv[rb]}, {xf}, {fw[b][8:12]}, {z(Dv[rb])}")
            a(f"{M} {Cq}, {fw[b][0:4]}, {ones}, {z(Cq)}")
            a(f"{M} {Ck}, {ones}, {fw[b][4:8]}, {z(Ck)}")
            a(f"{M} {Cv}, {ones}, {fw[b][8:12]}, {z(Cv)}")

        vP = None
        a.wait(vm=dtok[0], lg=a.ltok())
        a("s_barrier")
        self.stamp()
        dma(3)
        rtok = reads(0, 0)
        for s in range(8):
            for kk in range(4):
                n = 4 * s + kk
                if kk < 3:
                    nt = reads(s, kk + 1)
                    a.wait(lg=rtok)
                elif s < 7:
                    a.wait(vm=dtok[s + 1], lg=rtok)
                    a("s_barrier")
                    nt = reads(s + 1, 0)
                    if s + 4 < 8:
                        dma(s + 4)
                else:
                    a.wait(lg=rtok)
                    a("s_barrier")
                    nt = None
                if cfg.fused and s == 7 and kk == 0:
                    vP = V.alloc()
                    a(f"v_and_b32 {vP}, 15, {self.vLane}")
                    a(f"s_lshl_b32 {t[0]}, {sRt}, 4")
                    a(f"v_add_u32 {vP}, {t[0]}, {vP}")
                    a(f"s_lshl_b32 {t[0]}, {sCg}, 5")
                    tmp = V.alloc()
                    a(f"v_mov_b32 {tmp}, {t[0]}")
                    a(f"v_cmp_gt_u32 vcc, 16, {self.vLane}")
                    a(f"v_cndmask_b32 {vP}, {tmp}, {vP}, vcc")
                    V.release(tmp)
                    a(f"v_lshlrev_b32 {vP}, 6, {vP}")
                    a(f"s_mov_b32 {t[4]}, {hex(WS_F1)}")
                    pv, ptk = self.poll_issue(vP, t[4])
                mfmas(n)
                rtok = nt
        for r in fx + fw + vDx + vDw + vRx + [vRw]:
            V.release(r)
        self.stamp()
        if cfg.fused:
            self.poll_check(pv, ptk, vP, t[4])
            V.release(vP)
        self.stamp()
        vS = V.alloc()
        mq = [V.alloc(2), V.alloc(2)]
        mk = [V.alloc(16), V.alloc(16)]
        rk = [V.alloc(16), V.alloc(16)]
        sS = t[5]
        a(f"s_lshl_b32 {sS}, {sRt}, 1")
        a(f"s_add_u32 {sS}, {sS}, {sRh}")
        a(f"s_lshl_b32 {sS}, {sS}, 9")
        a(f"s_add_u32 {sS}, {sS}, {hex(WS_STAT)}")
        x = V.alloc()
        a(f"v_bfe_u32 {vS}, {self.vLane}, 3, 2")
        a(f"v_lshlrev_b32 {vS}, 6, {vS}")
        a(f"v_and_b32 {x}, 7, {self.vLane}")
        a(f"v_lshl_add_u32 {vS}, {x}, 2, {vS}")
        for rb in range(2):
            a(f"buffer_load_dword {mq[rb][0]}, {vS}, {self.srdWS}, {sS} offen offset:{256 * rb} sc1")
            a(f"buffer_load_dword {mq[rb][1]}, {vS}, {self.srdWS}, {sS} offen offset:{256 * rb + 32} sc1")
        qtok = a.vtok()
        a(f"v_lshrrev_b32 {x}, 5, {self.vLane}")
        a(f"v_lshlrev_b32 {x}, 4, {x}")
        ktok = []
        for rb in range(2):
            for q in range(4):
                a(f"buffer_load_dwordx4 {mk[rb][4 * q:4 * q + 4]}, {x}, {self.srdWS}, {sS} offen offset:{256 * rb + 64 * q} sc1")
                a(f"buffer_load_dwordx4 {rk[rb][4 * q:4 * q + 4]}, {x}, {self.srdWS}, {sS} offen offset:{256 * rb + 64 * q + 32} sc1")
            ktok.append(a.vtok())
        if cfg.fused:
            for _ in range(self.S2_SLOTS):
                self.s2_dma()
        sK = self.sP
        tb = V.alloc(16)
        rl = V.alloc(2)
        sE = self.sP2
        a(f"s_mov_b32 {sE[0]}, {f32(1e-6)}")
        a(f"s_mov_b32 {sE[1]}, {f32(LOG2E)}")

        def phi(D):
            for j in range(16):
                a(f"v_exp_f32 {tb[j]}, {tb[j]} clamp")
            for j in range(16):
                a(f"v_max_f32 {D[j]}, {D[j]}, {tb[j]}")
            for j in range(8):
                a(f"v_pk_add_f32 {D[2 * j:2 * j + 2]}, {D[2 * j:2 * j + 2]}, {sE} op_sel_hi:[1,0]")
            for j in range(8):
                a(f"v_cvt_pk_bf16_f32 {D[j]}, {D[2 * j]}, {D[2 * j + 1]}")

        vQ = V.alloc()
        a(f"v_lshlrev_b32 {vQ}, 4, {self.vLane}")
        sQo = t[6]
        a(f"s_lshl_b32 {sQo}, {sCg}, 1")
        a(f"s_add_u32 {sQo}, {sQo}, {sHp}")
        a(f"s_lshl_b32 {sQo}, {sQo}, 17")
        a(f"s_lshl_b32 {t[0]}, {sRt}, 1")
        a(f"s_add_u32 {t[0]}, {t[0]}, {sRh}")
        a(f"s_lshl_b32 {t[0]}, {t[0]}, 11")
        a(f"s_add_u32 {sQo}, {sQo}, {t[0]}")
        a(f"s_add_u32 {sQo}, {sQo}, {hex(WS_PQ)}")
        a(f"s_add_u32 {t[7]}, {sQo}, 0x10000")
        a.wait(vm=qtok)
        for rb in range(2):
            D = Dq[rb]
            a(f"v_mul_f32 {rl[0]}, {sE[1]}, {mq[rb][1]}")
            for j in range(8):
                a(f"v_pk_fma_f32 {D[2 * j:2 * j + 2]}, {Cq[2 * j:2 * j + 2]}, {mq[rb]}, {D[2 * j:2 * j + 2]} op_sel_hi:[1,0,1] neg_lo:[1,0,0] neg_hi:[1,0,0]")
            for j in range(8):
                a(f"v_pk_mul_f32 {tb[2 * j:2 * j + 2]}, {D[2 * j:2 * j + 2]}, {rl[0:2]} op_sel_hi:[1,0]")
            for j in range(8):
                a(f"v_pk_fma_f32 {D[2 * j:2 * j + 2]}, {D[2 * j:2 * j + 2]}, {mq[rb]}, 1.0 op_sel:[0,1,0] op_sel_hi:[1,1,0]")
            phi(D)
            a(f"buffer_store_dwordx4 {D[0:4]}, {vQ}, {self.srdWS}, {sQo} offen offset:{1024 * rb} sc1")
            a(f"buffer_store_dwordx4 {D[4:8]}, {vQ}, {self.srdWS}, {t[7]} offen offset:{1024 * rb} sc1")
        KV, Z = Cq, Dq[0]
        M = "v_mfma_f32_32x32x16_bf16"
        for rb in range(2):
            a.wait(vm=ktok[rb])
            D = Dv[rb]
            for j in range(8):
                a(f"v_pk_fma_f32 {D[2 * j:2 * j + 2]}, {mk[rb][2 * j:2 * j + 2]}, {Cv[0:2]}, {D[2 * j:2 * j + 2]} neg_lo:[1,0,0] neg_hi:[1,0,0]")
            for j in range(8):
                a(f"v_pk_mul_f32 {D[2 * j:2 * j + 2]}, {D[2 * j:2 * j + 2]}, {rk[rb][2 * j:2 * j + 2]}")
            for j in range(8):
                a(f"v_cvt_pk_bf16_f32 {D[j]}, {D[2 * j]}, {D[2 * j + 1]}")
            D = Dk[rb]
            for j in range(8):
                a(f"v_pk_fma_f32 {D[2 * j:2 * j + 2]}, {mk[rb][2 * j:2 * j + 2]}, {Ck[0:2]}, {D[2 * j:2 * j + 2]} neg_lo:[1,0,0] neg_hi:[1,0,0]")
            for j in range(8):
                a(f"v_pk_mul_f32 {D[2 * j:2 * j + 2]}, {D[2 * j:2 * j + 2]}, {rk[rb][2 * j:2 * j + 2]}")
            for j in range(8):
                a(f"v_pk_mul_f32 {tb[2 * j:2 * j + 2]}, {D[2 * j:2 * j + 2]}, {sE} op_sel:[0,1] op_sel_hi:[1,1]")
            for j in range(8):
                a(f"v_pk_add_f32 {D[2 * j:2 * j + 2]}, {D[2 * j:2 * j + 2]}, 1.0 op_sel_hi:[1,0]")
            phi(D)
            for h in range(2):
                z = (lambda r: r) if (rb or h) else (lambda r: '0')
                a(f"{M} {KV}, {Dk[rb][4 * h:4 * h + 4]}, {Dv[rb][4 * h:4 * h + 4]}, {z(KV)}")
                a(f"{M} {Z}, {Dk[rb][4 * h:4 * h + 4]}, {ones}, {z(Z)}")
        vA, vB = V.alloc(), x
        a(f"v_bfe_u32 {vA}, {self.vLane}, 4, 1")
        a(f"v_mul_u32_u24 {vA}, 1088, {vA}")
        a(f"v_lshrrev_b32 {vB}, 5, {self.vLane}")
        a(f"v_mul_u32_u24 {vB}, 272, {vB}")
        a(f"v_add_u32 {vA}, {vA}, {vB}")
        a(f"s_mul_i32 {t[0]}, {sRh}, 4352")
        a(f"s_mul_i32 {t[1]}, {sHp}, 2176")
        a(f"s_add_u32 {t[0]}, {t[0]}, {t[1]}")
        a(f"v_add_u32 {vA}, {t[0]}, {vA}")
        a(f"v_and_b32 {vB}, 15, {self.vLane}")
        a(f"v_lshl_add_u32 {vB}, {vB}, 4, {vA}")
        a(f"v_and_b32 {tb[0]}, 16, {self.vLane}")
        a(f"v_cmp_eq_u32 vcc, 0, {tb[0]}")
        for j in range(8):
            a(f"v_cndmask_b32 {tb[j]}, {KV[8 + j]}, {KV[j]}, vcc")
        for j in range(8):
            a(f"v_cndmask_b32 {tb[8 + j]}, {Z[8 + j]}, {Z[j]}, vcc")
        for j in range(2):
            a(f"ds_write_b128 {vB}, {tb[4 * j:4 * j + 4]} offset:{544 * j}")
            a(f"ds_write_b128 {vA}, {tb[8 + 4 * j:12 + 4 * j]} offset:{544 * j + 256}")
        a(f"v_lshlrev_b32 {vA}, 2, v0")
        a.wait(lg=a.ltok())
        a("s_barrier")
        for j in range(5):
            a(f"ds_read_b32 {tb[j]}, {vA} offset:{1024 * j}")
            a(f"ds_read_b32 {tb[8 + j]}, {vA} offset:{1024 * j + 4352}")
        a(f"s_mul_i32 {t[0]}, {sCg}, 4352")
        a(f"s_add_u32 {t[0]}, {t[0]}, {hex(WS_KVZ)}")
        a(f"s_add_u32 {t[1]}, {t[0]}, 4096")
        a.wait(lg=a.ltok())
        for j in range(5):
            a(f"v_add_f32 {tb[j]}, {tb[j]}, {tb[8 + j]}")
        for j in range(4):
            a(f"buffer_atomic_add_f32 {tb[j]}, {vA}, {self.srdWS}, {t[0]} offen offset:{1024 * j} sc0")
        L = a.label('AT5')
        a(f"s_cmp_lg_u32 {self.sWave}, 0")
        a(f"s_cbranch_scc1 {L}")
        n = a.vm_issued
        a(f"buffer_atomic_add_f32 {tb[4]}, {vA}, {self.srdWS}, {t[1]} offen sc0")
        a.vm_issued = n
        a(f"{L}:")
        atok = a.vtok()
        self.stamp()
        if cfg.fused:
            for _ in range(6):
                self.s2_park()
                self.s2_dma()
            a.wait(vm=atok, force=True)
            a("s_barrier")
            L = a.label('QF')
            a(f"s_cmp_lg_u32 {self.sWave}, 0")
            a(f"s_cbranch_scc1 {L}")
            a(f"s_lshl_b32 {t[0]}, {sCg}, 4")
            a(f"s_add_u32 {t[0]}, {t[0]}, {sRt}")
            a(f"s_lshl_b32 {t[0]}, {t[0]}, 6")
            a(f"s_add_u32 {t[0]}, {t[0]}, {hex(WS_F2 + 512 * 64)}")
            a(f"v_mov_b32 {rl[0]}, {self.sNonce}")
            a(f"v_mov_b32 {rl[1]}, 0")
            a("s_mov_b64 exec, 1")
            n = a.vm_issued
            a(f"buffer_store_dword {rl[0]}, {rl[1]}, {self.srdWS}, {t[0]} offen sc1")
            a.vm_issued = n
            a("s_mov_b64 exec, -1")
            a(f"{L}:")
        else:
            a.wait_all()
        for r in Dq + Dk + Dv + mq + mk + rk + [Cq, Ck, Cv, ones, tb, rl, vS, vQ, vA, x]:
            V.release(r)
        self.vH = V.alloc()
        x = V.alloc()
        a(f"v_lshrrev_b32 {x}, 5, {self.vLane}")
        a(f"v_and_b32 {self.vH}, 31, {self.vLane}")
        a(f"v_lshlrev_b32 {self.vH}, 4, {self.vH}")
        a(f"v_lshl_add_u32 {self.vH}, {x}, 13, {self.vH}")
        V.release(x)
        self.srd(self.srdG, self.pWs, G_BYTES, add=WS_G)

    def s2_block(self):
        a, V, A, cfg = self.a, self.V, self.A, self.cfg
        t = self.sT
        M = "v_mfma_f32_32x32x16_bf16"
        vH = self.vH
        while self.s2_n_park < self.S2_STEPS:
            p = self.s2_dma()
            if self.s2_n_dma == self.S2_STEPS or self.s2_n_dma - self.s2_n_park >= self.S2_SLOTS:
                assert self.s2_park()
        self.stamp()
        vP = V.alloc()
        if cfg.fused:
            a(f"v_and_b32 {vP}, 31, {self.vLane}")
            a(f"v_lshlrev_b32 {vP}, 6, {vP}")
            a(f"s_lshl_b32 {t[0]}, {self.sWave}, 11")
            a(f"s_add_u32 {t[0]}, {t[0]}, {hex(WS_F2 + 512 * 64)}")
            pv, ptk = self.poll_issue(vP, t[0])
            self.poll_check(pv, ptk, vP, t[0])
        self.stamp()
        vK, vQ = V.alloc(), V.alloc()
        a(f"v_and_b32 {vK}, 31, {self.vLane}")
        a(f"v_min_u32 {vK}, 16, {vK}")
        a(f"v_lshlrev_b32 {vK}, 4, {vK}")
        a(f"v_lshrrev_b32 {vQ}, 5, {self.vLane}")
        a(f"v_mul_u32_u24 {vQ}, 272, {vQ}")
        a(f"v_add_u32 {vK}, {vK}, {vQ}")
        a(f"v_lshlrev_b32 {vQ}, 4, {self.vLane}")
        a(f"s_mul_i32 {t[1]}, {self.sWave}, {8 * 1088}")
        a(f"s_add_u32 {t[1]}, {t[1]}, {hex(WS_KVZ)}")
        a(f"s_lshl_b32 {t[2]}, {self.sWave}, 19")
        a(f"s_lshl_b32 {t[3]}, {self.sSt}, 11")
        a(f"s_add_u32 {t[2]}, {t[2]}, {t[3]}")
        a(f"s_add_u32 {t[2]}, {t[2]}, {hex(WS_PQ)}")
        kv = [V.alloc(8, 4) for _ in range(8)]
        pq = [V.alloc(8, 4) for _ in range(8)]
        htok = []
        for h in range(8):
            a(f"buffer_load_dwordx4 {kv[h][0:4]}, {vK}, {self.srdWS}, {t[1]} offen sc1")
            a(f"buffer_load_dwordx4 {kv[h][4:8]}, {vK}, {self.srdWS}, {t[1]} offen offset:544 sc1")
            a(f"buffer_load_dwordx4 {pq[h][0:4]}, {vQ}, {self.srdWS}, {t[2]} offen sc1")
            a(f"buffer_load_dwordx4 {pq[h][4:8]}, {vQ}, {self.srdWS}, {t[2]} offen offset:1024 sc1")
            htok.append(a.vtok())
            if h < 7:
                a(f"s_add_u32 {t[1]}, {t[1]}, 1088")
                a(f"s_add_u32 {t[2]}, {t[2]}, 0x10000")
        V.release(vK)
        if cfg.fused:
            a(f"s_mul_i32 {t[4]}, {self.sWave}, 11")
            a(f"s_mul_i32 {t[4]}, {t[4]}, 21846")
            a(f"s_lshr_b32 {t[4]}, {t[4]}, 16")
            a(f"s_mul_i32 {t[5]}, {self.sWave}, 22")
            a(f"s_add_u32 {t[5]}, {t[5]}, 21")
            a(f"s_min_u32 {t[5]}, {t[5]}, 85")
            a(f"s_mul_i32 {t[5]}, {t[5]}, 10923")
            a(f"s_lshr_b32 {t[5]}, {t[5]}, 16")
            a(f"s_sub_u32 {t[5]}, {t[5]}, {t[4]}")
            a(f"s_lshl_b32 {t[5]}, {t[5]}, 2")
            a(f"s_add_u32 {t[5]}, {t[5]}, 3")
            a(f"v_min_u32 {vP}, {t[5]}, {self.vLane}")
            a(f"v_lshlrev_b32 {vP}, 6, {vP}")
            a(f"s_lshl_b32 {t[5]}, {self.sNt}, 4")
            a(f"s_add_u32 {t[4]}, {t[4]}, {t[5]}")
            a(f"s_lshl_b32 {t[4]}, {t[4]}, 8")
            a(f"s_add_u32 {t[4]}, {t[4]}, {hex(WS_F2)}")
        acc = [[V.alloc(16) for sb in range(2)] for nb in range(2)]
        tmp = [V.alloc(16), V.alloc(16)]
        of = [V.alloc(4), V.alloc(4)]
        sE = self.sP
        a(f"s_mov_b32 {sE[0]}, {f32(1e-6)}")

        def num(h):
            a.wait(vm=htok[h])
            for j in range(4):
                a(f"v_cvt_pk_bf16_f32 {kv[h][j]}, {kv[h][2 * j]}, {kv[h][2 * j + 1]}")
            for sb in range(2):
                a(f"{M} {tmp[sb]}, {kv[h][0:4]}, {pq[h][4 * sb:4 * sb + 4]}, 0")

        def norm(h):
            for sb in range(2):
                a(f"v_add_f32 {tmp[sb][8]}, {sE[0]}, {tmp[sb][8]}")
            for sb in range(2):
                a(f"v_rcp_f32 {tmp[sb][8]}, {tmp[sb][8]}")
            for sb in range(2):
                for j in range(4):
                    a(f"v_pk_mul_f32 {tmp[sb][2 * j:2 * j + 2]}, {tmp[sb][2 * j:2 * j + 2]}, {tmp[sb][8:10]} op_sel_hi:[1,0]")
                for j in range(4):
                    a(f"v_cvt_pk_bf16_f32 {of[sb][j]}, {tmp[sb][2 * j]}, {tmp[sb][2 * j + 1]}")

        def main(h):
            w = self.s2_frag[h]
            a.wait(lg=self.s2_ptok[h])
            for nb in range(2):
                for sb in range(2):
                    c = acc[nb][sb] if h else '0'
                    a(f"{M} {acc[nb][sb]}, {w[4 * nb:4 * nb + 4]}, {of[sb]}, {c}")

        num(0)
        for h in range(8):
            norm(h)
            if h < 7:
                num(h + 1)
            main(h)
            V.release(kv[h])
            V.release(pq[h])
            A.release(self.s2_frag[h])
        for r in tmp + of:
            V.release(r)
        self.stamp()
        if cfg.fused:
            pv, ptk = self.poll_issue(vP, t[4])
            self.poll_check(pv, ptk, vP, t[4])
        V.release(vP)
        self.stamp()
        a(f"s_mul_i32 {t[1]}, {self.sWave}, {22 * 16384}")
        a(f"s_lshl_b32 {t[2]}, {self.sNt}, 10")
        a(f"s_add_u32 {t[1]}, {t[1]}, {t[2]}")
        g = []
        gtok = []
        xres = V.alloc(8, 4)
        vb2 = V.alloc()
        for k in range(22):
            r = V.alloc(8, 4) if V.can(8, 4) and V.nfree() > 20 else A.alloc(8, 4)
            g.append(r)
            a(f"buffer_load_dwordx4 {r[0:4]}, {vH}, {self.srdG}, {t[1]} offen sc1")
            a(f"buffer_load_dwordx4 {r[4:8]}, {vH}, {self.srdG}, {t[1]} offen offset:512 sc1")
            gtok.append(a.vtok())
            if k < 21:
                a(f"s_add_u32 {t[1]}, {t[1]}, 16384")
        vO = V.alloc()
        self.srd(self.srdO, self.pOut, 2048 * 1024)
        self.srd(self.srdB, self.pB2, 2048 * 2)
        a(f"v_and_b32 {vb2}, 31, {self.vLane}")
        a(f"v_lshrrev_b32 {vO}, 5, {self.vLane}")
        a(f"v_lshlrev_b32 {vO}, 4, {vO}")
        a(f"v_lshl_add_u32 {vO}, {vb2}, 10, {vO}")
        a(f"v_lshlrev_b32 {vb2}, 1, {vb2}")
        a(f"s_lshr_b32 {t[2]}, {self.sWave}, 1")
        a(f"s_lshl_b32 {t[3]}, {self.sSt}, 1")
        a(f"s_add_u32 {t[2]}, {t[2]}, {t[3]}")
        a(f"s_lshl_b32 {t[3]}, {t[2]}, 6")
        a(f"s_lshl_b32 {t[2]}, {t[2]}, 15")
        a(f"s_and_b32 {t[4]}, {self.sWave}, 1")
        a(f"s_lshl_b32 {t[5]}, {self.sNt}, 1")
        a(f"s_add_u32 {t[4]}, {t[4]}, {t[5]}")
        a(f"s_lshl_b32 {t[4]}, {t[4]}, 6")
        a(f"s_add_u32 {t[2]}, {t[2]}, {t[4]}")
        a(f"buffer_load_dwordx4 {xres[0:4]}, {vO}, {self.srdX}, {t[2]} offen")
        a(f"buffer_load_dwordx4 {xres[4:8]}, {vO}, {self.srdX}, {t[2]} offen offset:32")
        a(f"buffer_load_ushort {vb2}, {vb2}, {self.srdB}, {t[3]} offen")
        xtok = a.vtok()
        for k in range(22):
            w = self.s2_frag[8 + k]
            a.wait(vm=gtok[k], lg=self.s2_ptok[8 + k])
            for nb in range(2):
                for sb in range(2):
                    a(f"{M} {acc[nb][sb]}, {g[k][4 * nb:4 * nb + 4]}, {w[4 * sb:4 * sb + 4]}, {acc[nb][sb]}")
        for k in range(22):
            (V if g[k].cls == 'v' else A).release(g[k])
            A.release(self.s2_frag[8 + k])
        self.stamp()
        blk = lambda o: acc[o & 1][o >> 1]
        vXw = V.alloc()
        sReg = t[6]
        a(f"s_mul_i32 {sReg}, {self.sWave}, {REGION}")
        a(f"v_add_u32 {vXw}, {sReg}, {vQ}")
        own = V.alloc(16)
        Lw = [a.label('YW') for _ in range(4)]
        Lj = a.label('YJ')
        if cfg.fused:
            a("s_barrier")
        for w in range(4):
            a(f"{Lw[w]}:")
            if w < 3:
                a(f"s_cmp_lg_u32 {self.sWave}, {w}")
                a(f"s_cbranch_scc1 {Lw[w + 1]}")
            n0 = a.lg_issued
            for o in range(4):
                if o == w:
                    continue
                d = (o - w - 1) % 4
                for q in range(4):
                    a(f"ds_write_b128 {vXw}, {blk(o)[4 * q:4 * q + 4]} offset:{(d * 4 + q) * 1024}")
            for q in range(8):
                a(f"v_pk_add_f32 {own[2 * q:2 * q + 2]}, {blk(w)[2 * q:2 * q + 2]}, 0")
            if w < 3:
                a.lg_issued = n0
                a(f"s_branch {Lj}")
        a(f"{Lj}:")
        for nb in range(2):
            for sb in range(2):
                V.release(acc[nb][sb])
        vRd = [V.alloc() for _ in range(3)]
        for j in range(3):
            a(f"s_add_u32 {t[0]}, {self.sWave}, {1 + j}")
            a(f"s_and_b32 {t[0]}, {t[0]}, 3")
            a(f"s_mul_i32 {t[0]}, {t[0]}, {REGION}")
            a(f"s_add_u32 {t[0]}, {t[0]}, {((2 - j) % 4) * 4096}")
            a(f"v_add_u32 {vRd[j]}, {t[0]}, {vQ}")
        a.wait(lg=a.ltok())
        a("s_barrier")
        rd = [V.alloc(16) for _ in range(3)]
        rtok = []
        for j in range(3):
            for q in range(4):
                a(f"ds_read_b128 {rd[j][4 * q:4 * q + 4]}, {vRd[j]} offset:{q * 1024}")
            rtok.append(a.ltok())
        a.wait(vm=xtok)
        a(f"v_lshlrev_b32 {vb2}, 16, {vb2}")
        b2p = V.alloc(2)
        a(f"v_mov_b32 {b2p[0]}, {vb2}")
        for q in range(8):
            a(f"v_pk_add_f32 {own[2 * q:2 * q + 2]}, {own[2 * q:2 * q + 2]}, {b2p} op_sel_hi:[1,0]")
        for j in range(3):
            a.wait(lg=rtok[j])
            for q in range(8):
                a(f"v_pk_add_f32 {own[2 * q:2 * q + 2]}, {own[2 * q:2 * q + 2]}, {rd[j][2 * q:2 * q + 2]}")
        for p in range(2):
            for j in range(4):
                a(f"v_permlane32_swap_b32 {own[8 * p + j]}, {own[8 * p + 4 + j]}")
        xs = rd[0]
        for p in range(2):
            for j in range(4):
                a(f"v_lshlrev_b32 {xs[8 * p + 2 * j]}, 16, {xres[4 * p + j]}")
                a(f"v_and_b32 {xs[8 * p + 2 * j + 1]}, 0xffff0000, {xres[4 * p + j]}")
        for p in range(2):
            for q in range(4):
                a(f"v_pk_add_f32 {own[8 * p + 2 * q:8 * p + 2 * q + 2]}, {own[8 * p + 2 * q:8 * p + 2 * q + 2]}, {xs[8 * p + 2 * q:8 * p + 2 * q + 2]}")
            for q in range(4):
                a(f"v_cvt_pk_bf16_f32 {own[8 * p + q]}, {own[8 * p + 2 * q]}, {own[8 * p + 2 * q + 1]}")
            a(f"buffer_store_dwordx4 {own[8 * p:8 * p + 4]}, {vO}, {self.srdO}, {t[2]} offen offset:{32 * p}")
        self.stamp()

    def code_prefetch(self):
        pass

    def kernel_head(self, name):
        self.a(f".globl {name}\n.p2align 8\n.type {name},@function\n{name}:")

    def build(self):
        a, cfg = self.a, self.cfg
        kernels = []
        if cfg.fused:
            name = NAME + '_kernel'
            kernels.append(name)
            self.kernel_head(name)
            self.prologue('END')
            self.stamp()
            a(f"s_cmp_ge_u32 {self.sQ}, 16")
            a("s_cbranch_scc1 QROLE")
            import copy
            st = (copy.deepcopy(self.V), copy.deepcopy(self.A), self.nstamp, a.vm_issued, a.vm_done, a.lg_issued, a.lg_done)
            self.p_block()
            self.s2_block()
            self.flush_stamps()
            a("s_endpgm")
            a("QROLE:")
            self.V, self.A, self.nstamp, a.vm_issued, a.vm_done, a.lg_issued, a.lg_done = st
            self.q_block()
            self.s2_block()
            self.flush_stamps()
            a("END:")
            a("s_endpgm")
        else:
            kernels = ['ln_kernel', 'st1_kernel', 'st2_kernel']
            self.kernel_head(kernels[0])
            self.nstamp = 0
            self.prologue('END0')
            self.stamp()
            self.ln_load()
            self.ln_compute(36864, REGION, 39936)
            self.ln_publish()
            self.flush_stamps(0)
            a("END0:")
            a("s_endpgm")
            a.reset_counters()
            self.kernel_head(kernels[1])
            self.nstamp = 0
            self.prologue('END1')
            self.stamp()
            a(f"s_cmp_ge_u32 {self.sQ}, 16")
            a("s_cbranch_scc1 QROLE")
            import copy
            st = (copy.deepcopy(self.V), copy.deepcopy(self.A), self.nstamp, a.vm_issued, a.vm_done, a.lg_issued, a.lg_done)
            self.p_block()
            self.flush_stamps(1)
            a("s_endpgm")
            a("QROLE:")
            self.V, self.A, self.nstamp, a.vm_issued, a.vm_done, a.lg_issued, a.lg_done = st
            self.q_block()
            self.flush_stamps(1)
            a("END1:")
            a("s_endpgm")
            a.reset_counters()
            self.kernel_head(kernels[2])
            self.nstamp = 0
            self.prologue('END2')
            self.stamp()
            self.s2_setup()
            self.vH = self.V.alloc()
            x = self.V.alloc()
            a(f"v_lshrrev_b32 {x}, 5, {self.vLane}")
            a(f"v_and_b32 {self.vH}, 31, {self.vLane}")
            a(f"v_lshlrev_b32 {self.vH}, 4, {self.vH}")
            a(f"v_lshl_add_u32 {self.vH}, {x}, 13, {self.vH}")
            self.V.release(x)
            self.srd(self.srdG, self.pWs, G_BYTES, add=WS_G)
            self.s2_block()
            self.flush_stamps(2)
            a("END2:")
            a("s_endpgm")
        body = a.finish()
        head = ["; parallel_sum__linear_attn_block__mixer_token_mlp__prompt: out = x + linattn(LN x) + mixer(LN x)",
                "; generated by work/gen.py (hand-written schedule, see the comments there)"]
        if cfg.fused:
            head.append("; @launch grid=(256,1,1) block=(256,1,1) lds=163840")
        else:
            for k in kernels:
                head.append(f"; @launch kernel={k} grid=(256,1,1) block=(256,1,1) lds=163840")
        head.append('.amdgcn_target "amdgcn-amd-amdhsa--gfx950"')
        head.append('.text')
        tail = ['.section .rodata,"a"']
        for k in kernels:
            tail.append(f""".p2align 6
.amdhsa_kernel {k}
  .amdhsa_next_free_vgpr 512
  .amdhsa_next_free_sgpr 102
  .amdhsa_accum_offset 256
  .amdhsa_group_segment_fixed_size 0
  .amdhsa_kernarg_size 88
  .amdhsa_user_sgpr_count 2
  .amdhsa_user_sgpr_kernarg_segment_ptr 1
  .amdhsa_system_sgpr_workgroup_id_x 1
.end_amdhsa_kernel""")
        return "\n".join(head) + "\n" + body + "\n" + "\n".join(tail) + "\n"


if __name__ == '__main__':
    cfg = Cfg()
    out = sys.argv[1]
    for kv in sys.argv[2:]:
        k, v = kv.split('=')
        setattr(cfg, k, int(v))
    g = Gen(cfg)
    txt = g.build()
    open(out, 'w').write(txt)
    print(f"wrote {out}: {len(txt)} bytes, {len(g.a.ins)} lines, {g.a.nops} pad states")
```

```python
import sys, struct, math
from asmlib import Asm, Pool, Reg

NAME = 'parallel_sum__linear_attn_block__mixer_token_mlp__prompt'

WS_HT = 0x000000
WS_G = 0x200000
G_BYTES = 172 * 8192
WS_PQ = 0x400000
WS_KVZ = 0x600000
WS_STAT = 0x610000
WS_F1 = 0x620000
WS_F2 = 0x630000
WS_TS = 0x700000
WS_SIZE = 0x800000

SPIN_MAX = 100000
REGION = 40960
LOG2E = 1.4426950408889634


def f32(x):
    return '0x%08x' % struct.unpack('<I', struct.pack('<f', x))[0]


class Cfg:
    fused = True
    stamps = False
    E = 8
    HN = 13
    code_prefetch = True


class Gen:
    def __init__(self, cfg):
        self.cfg = cfg
        self.a = Asm()
        self.nstamp = 0

    def new_pools(self):
        self.V = Pool('v', 256, reserved=[0, 255] if self.cfg.stamps else [0])
        self.A = Pool('a', 256)

    def srd(self, dst, ptr, size, add=0):
        a = self.a
        if add:
            a(f"s_add_u32 {dst[0]}, {ptr[0]}, {hex(add)}")
            a(f"s_addc_u32 {dst[1]}, {ptr[1]}, 0")
        else:
            a(f"s_mov_b32 {dst[0]}, {ptr[0]}")
            a(f"s_mov_b32 {dst[1]}, {ptr[1]}")
        a(f"s_mov_b32 {dst[2]}, {hex(size)}")
        a(f"s_mov_b32 {dst[3]}, 0x20000")

    def stamp(self):
        if self.cfg.stamps:
            k = self.nstamp
            self.nstamp += 1
            assert k < 32
            self.a("s_memrealtime s[76:77]" if self.cfg.stamps == 1 else "s_memtime s[76:77]")
            self.a("s_waitcnt lgkmcnt(0)")
            self.a(f"v_writelane_b32 v255, s76, {k}")
            self.a.lg_done = self.a.lg_issued

    def flush_stamps(self, kidx=0):
        if not self.cfg.stamps:
            return
        a = self.a
        a("s_waitcnt vmcnt(0) lgkmcnt(0)")
        a(f"s_lshl_b32 s3, s2, 2")
        a(f"s_add_u32 s3, s3, {self.sWave}")
        a(f"s_lshl_b32 s3, s3, 7")
        a(f"s_add_u32 s3, s3, {hex(WS_TS + kidx * 0x20000)}")
        a(f"v_lshlrev_b32 v1, 2, {self.vLane}")
        a("s_mov_b64 exec, 0xffffffff")
        a(f"buffer_store_dword v255, v1, {self.srdWS}, s3 offen")
        a("s_waitcnt vmcnt(0)")

    def prologue(self, endlabel):
        a = self.a
        self.new_pools()
        S = lambda lo, n=1: Reg('s', lo, n)
        self.pX, self.pWqkv, self.pWo, self.pW1 = S(4, 2), S(6, 2), S(8, 2), S(12, 2)
        self.pB1, self.pW2, self.pB2 = S(14, 2), S(16, 2), S(18, 2)
        self.pOut, self.pDbg, self.pWs = S(20, 2), S(22, 2), S(24, 2)
        self.srdX, self.srdW, self.srdWS, self.srdG = S(28, 4), S(32, 4), S(36, 4), S(40, 4)
        self.srdW2, self.srdWo, self.srdB, self.srdO = S(44, 4), S(48, 4), S(52, 4), S(56, 4)
        self.sWave, self.sXcd, self.sQ, self.sGrp = S(26), S(27), S(60), S(61)
        self.sNonce = S(62)
        self.sT = [S(63 + i) for i in range(9)]
        self.sP = S(72, 2)
        self.sP2 = S(74, 2)
        a(f"s_cmp_ge_u32 s2, 256")
        a(f"s_cbranch_scc1 {endlabel}")
        a("s_load_dwordx16 s[4:19], s[0:1], 0")
        a("s_load_dwordx4 s[20:23], s[0:1], 64")
        a("s_load_dwordx2 s[24:25], s[0:1], 80")
        self.vLane = self.V.alloc()
        a(f"v_lshrrev_b32 {self.vLane}, 6, v0")
        a(f"s_and_b32 {self.sXcd}, s2, 7")
        a(f"v_readfirstlane_b32 {self.sWave}, {self.vLane}")
        a(f"s_lshr_b32 {self.sQ}, s2, 3")
        a(f"v_and_b32 {self.vLane}, 63, v0")
        a(f"s_lshl_b32 {self.sGrp}, {self.sXcd}, 5")
        a(f"s_add_u32 {self.sGrp}, {self.sGrp}, {self.sQ}")
        a("s_waitcnt lgkmcnt(0)")
        if getattr(self.cfg, 'chase', 0):
            src = {1: 's[10:11]', 2: 's[16:17]', 3: 's[24:25]'}[self.cfg.chase]
            a("s_lshl_b32 s3, s2, 13")
            a("v_mov_b32 v200, s3")
            for i in range(32):
                a(f"global_load_dword v201, v200, {src}")
                a("s_waitcnt vmcnt(0)")
                a("v_add_u32 v200, 256, v200")
            a.reset_counters()
        self.srd(self.srdX, self.pX, 2048 * 1024)
        self.srd(self.srdWS, self.pWs, WS_SIZE)

    def ln_load(self):
        a, V = self.a, self.V
        self.vL16 = V.alloc()
        self.lnx = [V.alloc(4), V.alloc(4)]
        t = self.sT[0]
        a(f"v_lshlrev_b32 {self.vL16}, 4, {self.vLane}")
        a(f"s_lshl_b32 {t}, {self.sGrp}, 2")
        a(f"s_add_u32 {t}, {t}, {self.sWave}")
        a(f"s_lshl_b32 {t}, {t}, 11")
        a(f"buffer_load_dwordx4 {self.lnx[0]}, {self.vL16}, {self.srdX}, {t} offen")
        a(f"buffer_load_dwordx4 {self.lnx[1]}, {self.vL16}, {self.srdX}, {t} offen offset:1024")
        self.ln_tok = a.vtok()
        if self.cfg.fused:
            L = a.label('NOTAG')
            a(f"s_or_b32 {t}, s2, {self.sWave}")
            a(f"s_cmp_lg_u32 {t}, 0")
            a(f"s_cbranch_scc1 {L}")
            a(f"s_memrealtime {self.sP}")
            tmp = V.alloc(2)
            a(f"v_mov_b32 {tmp[0]}, 0")
            a("s_waitcnt lgkmcnt(0)")
            a(f"s_or_b32 {self.sP[0]}, {self.sP[0]}, 1")
            a(f"v_mov_b32 {tmp[1]}, {self.sP[0]}")
            n = a.vm_issued
            a(f"global_store_dword {tmp[0]}, {tmp[1]}, {self.pDbg} sc1")
            a.vm_issued = n
            a(f"{L}:")
            V.release(tmp)

    def reduce2(self, x, y):
        a = self.a
        a(f"v_permlane32_swap_b32 {x}, {y}")
        a(f"v_add_f32 {x}, {x}, {y}")
        for sh in (1, 2, 4, 8):
            a(f"v_add_f32_dpp {x}, {x}, {x} row_shr:{sh} row_mask:0xf bank_mask:0xf bound_ctrl:0")
        a(f"v_add_f32_dpp {x}, {x}, {x} row_bcast:15 row_mask:0xa bank_mask:0xf")

    def ln_compute(self, stg_base, stg_stride, stat_lds):
        a, V = self.a, self.V
        c = [V.alloc(8), V.alloc(8)]
        t = [V.alloc(4), V.alloc(4)]
        sMean, sR, sA = self.sP, self.sP2, Reg('s', 70, 2)
        vW, vR, vSt = V.alloc(), V.alloc(), V.alloc()
        tm = self.sT[0]
        a(f"v_lshrrev_b32 {vW}, 4, {self.vLane}")
        a(f"s_mov_b32 {tm}, {stg_stride}")
        a(f"v_mul_lo_u32 {vW}, {vW}, {tm}")
        a(f"v_and_b32 {vR}, 15, {self.vLane}")
        a(f"v_lshl_add_u32 {vW}, {vR}, 4, {vW}")
        a(f"s_mul_i32 {tm}, {self.sWave}, 640")
        a(f"s_add_u32 {tm}, {tm}, {stg_base}")
        a(f"v_add_u32 {vW}, {tm}, {vW}")
        a(f"v_lshrrev_b32 {vR}, 2, {vR}")
        a(f"v_mul_u32_u24 {vR}, 320, {vR}")
        a(f"v_lshrrev_b32 {vSt}, 4, {self.vLane}")
        a(f"v_lshl_add_u32 {vR}, {vSt}, 5, {vR}")
        a(f"v_and_b32 {vSt}, 3, {self.vLane}")
        a(f"v_lshl_add_u32 {vR}, {vSt}, 3, {vR}")
        a(f"s_mul_i32 {tm}, {self.sWave}, {stg_stride}")
        a(f"s_add_u32 {tm}, {tm}, {stg_base}")
        a(f"v_add_u32 {vR}, {tm}, {vR}")
        a(f"s_lshl_b32 {tm}, {self.sWave}, 3")
        a(f"s_add_u32 {tm}, {tm}, {stat_lds}")
        a(f"v_mov_b32 {vSt}, {tm}")
        a.wait(vm=self.ln_tok)
        self.stamp()
        for r in range(2):
            for j in range(4):
                a(f"v_lshlrev_b32 {c[r][2 * j]}, 16, {self.lnx[r][j]}")
                a(f"v_and_b32 {c[r][2 * j + 1]}, 0xffff0000, {self.lnx[r][j]}")
        for r in range(2):
            a(f"v_pk_add_f32 {t[r][0:2]}, {c[r][0:2]}, {c[r][2:4]}")
            a(f"v_pk_add_f32 {t[r][2:4]}, {c[r][4:6]}, {c[r][6:8]}")
        for r in range(2):
            a(f"v_pk_add_f32 {t[r][0:2]}, {t[r][0:2]}, {t[r][2:4]}")
        for r in range(2):
            a(f"v_add_f32 {t[r][0]}, {t[r][0]}, {t[r][1]}")
        self.reduce2(t[0][0], t[1][0])
        a(f"v_mul_f32 {t[0][0]}, {f32(1 / 512)}, {t[0][0]}")
        a(f"v_readlane_b32 {sMean[0]}, {t[0][0]}, 31")
        a(f"v_readlane_b32 {sMean[1]}, {t[0][0]}, 63")
        sel = ["op_sel:[0,0] op_sel_hi:[1,0]", "op_sel:[0,1] op_sel_hi:[1,1]"]
        for r in range(2):
            for j in range(4):
                a(f"v_pk_add_f32 {c[r][2 * j:2 * j + 2]}, {c[r][2 * j:2 * j + 2]}, {sMean} {sel[r]} neg_lo:[0,1] neg_hi:[0,1]")
        for r in range(2):
            a(f"v_pk_mul_f32 {t[r][0:2]}, {c[r][0:2]}, {c[r][0:2]}")
        for j in range(1, 4):
            for r in range(2):
                a(f"v_pk_fma_f32 {t[r][0:2]}, {c[r][2 * j:2 * j + 2]}, {c[r][2 * j:2 * j + 2]}, {t[r][0:2]}")
        for r in range(2):
            a(f"v_add_f32 {t[r][0]}, {t[r][0]}, {t[r][1]}")
        self.reduce2(t[0][0], t[1][0])
        var, r1, u, aa = t[0][0], t[0][1], t[0][2], t[0][3]
        eps = t[1][0]
        a(f"v_mov_b32 {eps}, {f32(1e-5)}")
        a(f"v_mul_f32 {var}, {f32(1 / 512)}, {var}")
        a(f"v_add_f32 {r1}, {var}, {eps}")
        a(f"v_rsq_f32 {r1}, {r1}")
        a(f"v_mul_f32 {u}, {var}, {r1}")
        a(f"v_fma_f32 {u}, {u}, {r1}, {eps}")
        a(f"v_rsq_f32 {u}, {u}")
        a(f"v_mul_f32 {aa}, {u}, {r1}")
        a(f"v_readlane_b32 {sR[0]}, {r1}, 31")
        a(f"v_readlane_b32 {sR[1]}, {r1}, 63")
        a(f"v_readlane_b32 {sA[0]}, {aa}, 31")
        a(f"v_readlane_b32 {sA[1]}, {aa}, 63")
        for r in range(2):
            for j in range(4):
                a(f"v_pk_mul_f32 {c[r][2 * j:2 * j + 2]}, {c[r][2 * j:2 * j + 2]}, {sA} {sel[r]}")
        for r in range(2):
            for j in range(4):
                a(f"v_cvt_pk_bf16_f32 {self.lnx[r][j]}, {c[r][2 * j]}, {c[r][2 * j + 1]}")
            a(f"ds_write_b128 {vW}, {self.lnx[r]} offset:{320 * r}")
        a(f"v_mov_b32 {t[0][0]}, {sMean[0]}")
        a(f"v_mov_b32 {t[0][1]}, {sMean[1]}")
        a(f"v_mov_b32 {t[0][2]}, {sR[0]}")
        a(f"v_mov_b32 {t[0][3]}, {sR[1]}")
        a(f"ds_write_b64 {vSt}, {t[0][0:2]}")
        a(f"ds_write_b64 {vSt}, {t[0][2:4]} offset:32")
        ntok = None
        if self.cfg.fused:
            a(f"v_mov_b32 {vW}, 0")
            a(f"global_load_dword {t[1][1]}, {vW}, {self.pDbg} sc1")
            ntok = a.vtok()
        a.wait(lg=a.ltok())
        a("s_barrier")
        for j in range(2):
            a(f"ds_read_b64_tr_b16 {c[j][0:2]}, {vR} offset:{128 * j}")
            a(f"ds_read_b64_tr_b16 {c[j][2:4]}, {vR} offset:{128 * j + 1280}")
        a(f"v_and_b32 {vSt}, 3, {self.vLane}")
        a(f"v_lshlrev_b32 {vSt}, 4, {vSt}")
        a(f"ds_read_b128 {t[0]}, {vSt} offset:{stat_lds}" if stat_lds < 65536 else
          f"v_add_u32 {vW}, {stat_lds}, {vSt}\nds_read_b128 {t[0]}, {vW}")
        s0, s1 = self.sT[0], self.sT[1]
        a(f"s_lshl_b32 {s0}, {self.sGrp}, 13")
        a(f"s_lshl_b32 {s1}, {self.sWave}, 11")
        a(f"s_add_u32 {s0}, {s0}, {s1}")
        a(f"s_lshl_b32 {s1}, {self.sGrp}, 6")
        a(f"s_add_u32 {s1}, {s1}, {hex(WS_STAT)}")
        a.wait(lg=a.ltok())
        a(f"buffer_store_dwordx4 {c[0][0:4]}, {self.vL16}, {self.srdWS}, {s0} offen sc1")
        a(f"buffer_store_dwordx4 {c[1][0:4]}, {self.vL16}, {self.srdWS}, {s0} offen offset:1024 sc1")
        a("s_mov_b64 exec, 0xf")
        a(f"buffer_store_dwordx4 {t[0]}, {vSt}, {self.srdWS}, {s1} offen sc1")
        a("s_mov_b64 exec, -1")
        L = a.label('NOZERO')
        a(f"s_or_b32 {s0}, {self.sQ}, {self.sWave}")
        a(f"s_cmp_lg_u32 {s0}, 0")
        a(f"s_cbranch_scc1 {L}")
        n = a.vm_issued
        for j in range(4):
            a(f"v_mov_b32 {c[0][4 + j]}, 0")
        a(f"s_mul_i32 {s0}, {self.sXcd}, 4352")
        a(f"s_add_u32 {s0}, {s0}, {hex(WS_KVZ)}")
        for j in range(4):
            a(f"buffer_store_dwordx4 {c[0][4:8]}, {self.vL16}, {self.srdWS}, {s0} offen offset:{1024 * j} sc1")
        a(f"s_add_u32 {s0}, {s0}, 4096")
        a("s_mov_b64 exec, 0xffff")
        a(f"buffer_store_dwordx4 {c[0][4:8]}, {self.vL16}, {self.srdWS}, {s0} offen sc1")
        a("s_mov_b64 exec, -1")
        a.vm_issued = n
        a(f"{L}:")
        self.ln_store_tok = a.vtok()
        self.ln_tmp = (c, t, vW, vR, vSt)
        self.vNonce = t[1][1]

    def ln_publish(self):
        a, V = self.a, self.V
        c, t, vW, vR, vSt = self.ln_tmp
        if self.cfg.fused:
            a.wait(vm=self.ln_store_tok, force=True)
            L, L2 = a.label('TAG'), a.label('TAGOK')
            a(f"v_readfirstlane_b32 {self.sNonce}, {self.vNonce}")
            a(f"v_mov_b32 {vW}, 0")
            a(f"s_cmp_lg_u32 {self.sNonce}, 0")
            a(f"s_cbranch_scc1 {L2}")
            a(f"s_mov_b32 s3, 0")
            a(f"{L}:")
            n = a.vm_issued
            a("s_add_u32 s3, s3, 1")
            a(f"s_cmp_gt_u32 s3, {SPIN_MAX}")
            a(f"s_cbranch_scc1 {L2}")
            a(f"global_load_dword {self.vNonce}, {vW}, {self.pDbg} sc1")
            a.vm_issued = n
            a("s_waitcnt vmcnt(0)")
            a(f"v_readfirstlane_b32 {self.sNonce}, {self.vNonce}")
            a(f"s_cmp_eq_u32 {self.sNonce}, 0")
            a(f"s_cbranch_scc1 {L}")
            a(f"{L2}:")
            s0 = self.sT[0]
            a(f"s_lshl_b32 {s0}, {self.sWave}, 8")
            a(f"s_add_u32 {s0}, {s0}, {self.sGrp}")
            a(f"s_lshl_b32 {s0}, {s0}, 6")
            a(f"s_add_u32 {s0}, {s0}, {hex(WS_F1)}")
            a(f"v_mov_b32 {self.vNonce}, {self.sNonce}")
            a("s_mov_b64 exec, 1")
            a(f"buffer_store_dword {self.vNonce}, {vW}, {self.srdWS}, {s0} offen sc1")
            a("s_mov_b64 exec, -1")
        for r in c + t + [vW, vR, vSt] + self.lnx:
            V.release(r)
        self.stamp()

    def poll_issue(self, voff, soff):
        a = self.a
        v = self.V.alloc()
        a(f"buffer_load_dword {v}, {voff}, {self.srdWS}, {soff} offen sc1")
        return v, a.vtok()

    def poll_check(self, v, tok, voff, soff):
        a = self.a
        L, L2 = a.label('POLL'), a.label('POLLOK')
        a.wait(vm=tok)
        a(f"v_cmp_ne_u32 vcc, {self.sNonce}, {v}")
        a(f"s_cbranch_vccz {L2}")
        a(f"s_mov_b32 s3, 0")
        a(f"{L}:")
        n = a.vm_issued
        a("s_add_u32 s3, s3, 1")
        a(f"s_cmp_gt_u32 s3, {SPIN_MAX}")
        a(f"s_cbranch_scc1 {L2}")
        a("s_sleep 2")
        a(f"buffer_load_dword {v}, {voff}, {self.srdWS}, {soff} offen sc1")
        a.vm_issued = n
        a("s_waitcnt vmcnt(0)")
        a(f"v_cmp_ne_u32 vcc, {self.sNonce}, {v}")
        a(f"s_cbranch_vccnz {L}")
        a(f"{L2}:")
        self.V.release(v)

    def s2_setup(self):
        a, V = self.a, self.V
        self.sSt, self.sNt = Reg('s', 100), Reg('s', 101)
        t = self.sT
        a(f"s_lshr_b32 {t[0]}, {self.sXcd}, 1")
        a(f"s_lshl_b32 {t[0]}, {t[0]}, 3")
        a(f"s_and_b32 {t[1]}, {self.sQ}, 7")
        a(f"s_add_u32 {self.sSt}, {t[0]}, {t[1]}")
        a(f"s_and_b32 {t[0]}, {self.sXcd}, 1")
        a(f"s_lshl_b32 {t[0]}, {t[0]}, 2")
        a(f"s_lshr_b32 {t[1]}, {self.sQ}, 3")
        a(f"s_add_u32 {self.sNt}, {t[0]}, {t[1]}")
        self.srd(self.srdW2, self.pW2, 1376 * 4096)
        self.srd(self.srdWo, self.pWo, 512 * 1024)
        self.vS2w2 = [V.alloc(), V.alloc()]
        self.vS2wo = [V.alloc(), V.alloc()]
        self.vS2tr = [V.alloc(), V.alloc()]
        x, y = self.vS2tr
        a(f"v_lshrrev_b32 {x}, 2, {self.vLane}")
        a(f"v_and_b32 {x}, 4, {x}")
        a(f"v_xor_b32 {x}, {x}, {self.vLane}")
        a(f"v_and_b32 {x}, 7, {x}")
        a(f"v_lshlrev_b32 {x}, 4, {x}")
        a(f"v_lshrrev_b32 {y}, 3, {self.vLane}")
        a(f"v_lshl_add_u32 {self.vS2w2[0]}, {y}, 12, {x}")
        a(f"v_add_u32 {self.vS2w2[1]}, {8 * 4096 - 1024}, {self.vS2w2[0]}")
        a(f"v_lshl_add_u32 {self.vS2wo[0]}, {y}, 10, {x}")
        a(f"v_add_u32 {self.vS2wo[1]}, {8 * 1024 - 1024}, {self.vS2wo[0]}")
        a(f"v_lshrrev_b32 {x}, 5, {self.vLane}")
        a(f"v_lshlrev_b32 {x}, 9, {x}")
        a(f"v_bfe_u32 {y}, {self.vLane}, 2, 2")
        a(f"v_lshl_add_u32 {x}, {y}, 7, {x}")
        a(f"v_bfe_u32 {y}, {self.vLane}, 4, 1")
        a(f"v_lshl_add_u32 {x}, {y}, 5, {x}")
        a(f"v_and_b32 {y}, 3, {self.vLane}")
        a(f"v_lshl_add_u32 {x}, {y}, 3, {x}")
        a(f"v_bfe_u32 {y}, {self.vLane}, 3, 1")
        a(f"v_lshl_add_u32 {x}, {y}, 6, {x}")
        self.sRing = Reg('s', 99)
        a(f"s_mul_i32 {self.sRing}, {self.sWave}, {REGION}")
        a(f"s_add_u32 {self.sRing}, {self.sRing}, 18432")
        a(f"v_add_u32 {x}, {self.sRing}, {x}")
        a(f"v_xor_b32 {y}, 64, {x}")
        self.sWoOff, self.sW2Off = Reg('s', 98), Reg('s', 97)
        a(f"s_lshl_b32 {self.sWoOff}, {self.sWave}, 17")
        a(f"s_lshl_b32 {t[0]}, {self.sNt}, 7")
        a(f"s_add_u32 {self.sWoOff}, {self.sWoOff}, {t[0]}")
        a(f"s_mul_i32 {self.sW2Off}, {self.sWave}, {22 * 16 * 4096}")
        a(f"s_lshl_b32 {t[0]}, {self.sSt}, 7")
        a(f"s_add_u32 {self.sW2Off}, {self.sW2Off}, {t[0]}")
        self.s2_n_dma = 0
        self.s2_n_park = 0
        self.s2_dtok = {}
        self.s2_ptok = {}
        self.s2_frag = {}

    S2_STEPS = 30
    S2_SLOTS = 11

    def s2_dma(self):
        a = self.a
        k = self.s2_n_dma
        if k >= self.S2_STEPS:
            return False
        if k >= self.S2_SLOTS:
            if k - self.S2_SLOTS >= self.s2_n_park:
                return False
            a.wait(lg=self.s2_ptok[k - self.S2_SLOTS])
        slot = k % self.S2_SLOTS
        a(f"s_add_u32 m0, {self.sRing}, {slot * 2048}")
        if k < 8:
            srd, vo, so, inc = self.srdWo, self.vS2wo, self.sWoOff, 16 * 1024
        else:
            srd, vo, so, inc = self.srdW2, self.vS2w2, self.sW2Off, 16 * 4096
        a(f"buffer_load_dwordx4 {vo[0]}, {srd}, {so} offen lds")
        a(f"buffer_load_dwordx4 {vo[1]}, {srd}, {so} offen offset:1024 lds")
        a(f"s_add_u32 {so}, {so}, {inc}")
        self.s2_dtok[k] = a.vtok()
        self.s2_n_dma += 1
        return True

    def s2_park(self):
        a = self.a
        k = self.s2_n_park
        if k >= self.s2_n_dma or not self.A.can(8, 4):
            return False
        a.wait(vm=self.s2_dtok[k])
        r = self.A.alloc(8, 4)
        slot = k % self.S2_SLOTS
        for b in range(2):
            a(f"ds_read_b64_tr_b16 {r[4 * b:4 * b + 2]}, {self.vS2tr[b]} offset:{slot * 2048}")
            a(f"ds_read_b64_tr_b16 {r[4 * b + 2:4 * b + 4]}, {self.vS2tr[b]} offset:{slot * 2048 + 1024}")
        self.s2_frag[k] = r
        self.s2_ptok[k] = a.ltok()
        self.s2_n_park += 1
        return True

    def p_block(self):
        a, V, A, cfg = self.a, self.V, self.A, self.cfg
        t = self.sT
        sFt, sDt, sW1, sReg = Reg('s', 96), Reg('s', 95), Reg('s', 94), Reg('s', 93)
        if cfg.fused:
            self.ln_load()
        a(f"s_lshr_b32 {t[0]}, {self.sQ}, 3")
        a(f"s_lshl_b32 {t[0]}, {t[0]}, 3")
        a(f"s_add_u32 {sFt}, {t[0]}, {self.sXcd}")
        a(f"s_and_b32 {sDt}, {self.sQ}, 7")
        self.srd(self.srdW, self.pW1, 2048 * 2752)
        vD = [V.alloc() for _ in range(3)]
        x, y = V.alloc(), V.alloc()
        for j in range(3):
            a(f"v_add_u32 {x}, {64 * j}, {self.vLane}")
            a(f"v_mul_u32_u24 {y}, 5462, {x}")
            a(f"v_lshrrev_b32 {y}, 16, {y}")
            a(f"v_mul_u32_u24 {vD[j]}, {2752 - 192}, {y}")
            a(f"v_lshl_add_u32 {vD[j]}, {x}, 4, {vD[j]}")
            if j:
                a(f"v_subrev_u32 {vD[j]}, {1024 * j}, {vD[j]}")
        a(f"s_mul_i32 {sW1}, {self.sWave}, {512 * 2752}")
        a(f"s_mul_i32 {t[0]}, {sFt}, 192")
        a(f"s_add_u32 {sW1}, {sW1}, {t[0]}")
        a(f"s_mul_i32 {sReg}, {self.sWave}, {REGION}")
        NS = 13
        dtok = {}
        st = {'dma': 0}

        def dma():
            k = st['dma']
            a(f"s_add_u32 m0, {sReg}, {(k % NS) * 3072}")
            for j in range(3):
                a(f"buffer_load_dwordx4 {vD[j]}, {self.srdW}, {sW1} offen offset:{1024 * j} lds")
            a(f"s_add_u32 {sW1}, {sW1}, {16 * 2752}")
            dtok[k] = a.vtok()
            st['dma'] += 1

        for k in range(cfg.E if cfg.fused else NS):
            dma()
        vT, vH = V.alloc(), V.alloc()
        a(f"v_lshrrev_b32 {x}, 5, {self.vLane}")
        a(f"v_bfe_u32 {y}, {self.vLane}, 2, 2")
        a(f"v_lshl_add_u32 {y}, {x}, 3, {y}")
        a(f"v_mul_u32_u24 {vT}, 192, {y}")
        a(f"v_bfe_u32 {y}, {self.vLane}, 4, 1")
        a(f"v_lshl_add_u32 {vT}, {y}, 5, {vT}")
        a(f"v_and_b32 {y}, 3, {self.vLane}")
        a(f"v_lshl_add_u32 {vT}, {y}, 3, {vT}")
        a(f"v_add_u32 {vT}, {sReg}, {vT}")
        a(f"v_and_b32 {y}, 31, {self.vLane}")
        a(f"v_lshlrev_b32 {y}, 4, {y}")
        a(f"v_lshl_add_u32 {vH}, {x}, 13, {y}")
        self.vH = vH
        self.srd(self.srdB, self.pB1, 1376 * 2)
        bias = [V.alloc(4) for _ in range(3)]
        a(f"v_lshlrev_b32 {y}, 3, {x}")
        for i in range(3):
            a(f"s_mul_i32 {t[0]}, {self.sWave}, 3")
            a(f"s_add_u32 {t[0]}, {t[0]}, {i}")
            a(f"s_lshr_b32 {t[0]}, {t[0]}, 1")
            a(f"s_lshl_b32 {t[0]}, {t[0]}, 5")
            a(f"s_mul_i32 {t[1]}, {sFt}, 192")
            a(f"s_add_u32 {t[0]}, {t[0]}, {t[1]}")
            a(f"buffer_load_dwordx2 {bias[i][0:2]}, {y}, {self.srdB}, {t[0]} offen")
            a(f"buffer_load_dwordx2 {bias[i][2:4]}, {y}, {self.srdB}, {t[0]} offen offset:16")
        V.release(x)
        V.release(y)
        if cfg.fused:
            self.code_prefetch()
            self.ln_compute(36864, REGION, 39936)
            while st['dma'] < NS:
                dma()
            self.ln_publish()
            self.s2_setup()
        self.srd(self.srdG, self.pWs, G_BYTES, add=WS_G)

        def tr_reads(dst, k):
            for b in range(3):
                a(f"ds_read_b64_tr_b16 {dst[4 * b:4 * b + 2]}, {vT} offset:{(k % NS) * 3072 + 64 * b}")
                a(f"ds_read_b64_tr_b16 {dst[4 * b + 2:4 * b + 4]}, {vT} offset:{(k % NS) * 3072 + 64 * b + 768}")

        NPARK = 20
        park = []
        ptok = {}
        for k in range(NPARK):
            a.wait(vm=dtok[k])
            r = A.alloc(12, 4)
            park.append(r)
            tr_reads(r, k)
            ptok[k] = a.ltok()
            if k >= 1 and st['dma'] < 32:
                a.wait(lg=ptok[k - 1])
                dma()
        assert st['dma'] == 32
        self.stamp()
        acc = [[V.alloc(16) for db in range(2)] for b in range(3)]
        order = list(range(20, 32)) + list(range(20))
        sH = Reg('s', 92)
        a(f"s_lshl_b32 {sH}, {self.sWave}, 19")
        a(f"s_lshl_b32 {t[0]}, {sDt}, 10")
        a(f"s_add_u32 {sH}, {sH}, {t[0]}")
        if cfg.fused:
            vP = V.alloc()
            a(f"v_lshlrev_b32 {vP}, 6, {self.vLane}")
            a(f"s_lshr_b32 {t[0]}, {sDt}, 1")
            a(f"s_lshl_b32 {t[0]}, {t[0]}, 2")
            a(f"s_add_u32 {t[0]}, {t[0]}, {self.sWave}")
            a(f"s_lshl_b32 {t[0]}, {t[0]}, 12")
            a(f"s_add_u32 {t[0]}, {t[0]}, {hex(WS_F1)}")
            pv, ptk = self.poll_issue(vP, t[0])
            self.poll_check(pv, ptk, vP, t[0])
            V.release(vP)
        self.stamp()
        HN = cfg.HN
        hreg = [V.alloc(8, 4) for _ in range(HN)]
        htok = {}

        def hload(n):
            k = order[n]
            r = hreg[n % HN]
            a(f"s_add_u32 {t[2]}, {sH}, {k * 16384}")
            a(f"buffer_load_dwordx4 {r[0:4]}, {vH}, {self.srdWS}, {t[2]} offen sc1")
            a(f"buffer_load_dwordx4 {r[4:8]}, {vH}, {self.srdWS}, {t[2]} offen offset:512 sc1")
            htok[n] = a.vtok()

        for n in range(HN):
            hload(n)
        wtmp = [V.alloc(12, 4), V.alloc(12, 4)]
        a.wait(vm=dtok[31])
        tr_reads(wtmp[0], order[0])
        wtok = {0: a.ltok()}
        for n in range(32):
            k = order[n]
            if n + 1 < 12:
                tr_reads(wtmp[(n + 1) % 2], order[n + 1])
                wtok[n + 1] = a.ltok()
            if n < 12:
                a.wait(vm=htok[n], lg=wtok[n])
                w = wtmp[n % 2]
            else:
                a.wait(vm=htok[n], lg=ptok[k])
                w = park[k]
            h = hreg[n % HN]
            for b in range(3):
                for db in range(2):
                    c = acc[b][db] if n else '0'
                    a(f"v_mfma_f32_32x32x16_bf16 {acc[b][db]}, {w[4 * b:4 * b + 4]}, {h[4 * db:4 * db + 4]}, {c}")
            if n + HN < 32:
                hload(n + HN)
            if n >= 12:
                A.release(park[k])
            if cfg.fused and n >= 7:
                self.s2_park()
                self.s2_dma()
        for r in hreg + wtmp + vD + [vT]:
            V.release(r)
        self.stamp()
        unit = lambda u: acc[u >> 2][u & 1][8 * ((u >> 1) & 1):8 * ((u >> 1) & 1) + 8]
        vX = V.alloc()
        a(f"v_lshlrev_b32 {vX}, 4, {self.vLane}")
        vXw = V.alloc()
        a(f"v_add_u32 {vXw}, {sReg}, {vX}")
        Lw = [a.label('XW') for _ in range(4)]
        Lj = a.label('XJ')
        own = V.alloc(24, 4)
        for w in range(4):
            a(f"{Lw[w]}:")
            if w < 3:
                a(f"s_cmp_lg_u32 {self.sWave}, {w}")
                a(f"s_cbranch_scc1 {Lw[w + 1]}")
            n0 = a.lg_issued
            for o in range(4):
                if o == w:
                    continue
                d = (o - w - 1) % 4
                for i in range(3):
                    for q in range(2):
                        a(f"ds_write_b128 {vXw}, {unit(3 * o + i)[4 * q:4 * q + 4]} offset:{(d * 6 + i * 2 + q) * 1024}")
            for i in range(3):
                for q in range(4):
                    a(f"v_pk_add_f32 {own[8 * i + 2 * q:8 * i + 2 * q + 2]}, {unit(3 * w + i)[2 * q:2 * q + 2]}, 0")
            if w < 3:
                a.lg_issued = n0
                a(f"s_branch {Lj}")
        a(f"{Lj}:")
        for b in range(3):
            for db in range(2):
                V.release(acc[b][db])
        vRd = [V.alloc() for _ in range(3)]
        for j in range(3):
            a(f"s_add_u32 {t[0]}, {self.sWave}, {1 + j}")
            a(f"s_and_b32 {t[0]}, {t[0]}, 3")
            a(f"s_mul_i32 {t[0]}, {t[0]}, {REGION}")
            a(f"s_add_u32 {t[0]}, {t[0]}, {((2 - j) % 4) * 6144}")
            a(f"v_add_u32 {vRd[j]}, {t[0]}, {vX}")
        a.wait(lg=a.ltok())
        a("s_barrier")
        rd = [V.alloc(24, 4) for _ in range(3)]
        rtok = []
        for i in range(3):
            for j in range(3):
                for q in range(2):
                    a(f"ds_read_b128 {rd[j][8 * i + 4 * q:8 * i + 4 * q + 4]}, {vRd[j]} offset:{(i * 2 + q) * 1024}")
            rtok.append(a.ltok())
        c0 = -2.0 * math.sqrt(2.0 / math.pi) * LOG2E
        sC = self.sP
        a(f"s_mov_b32 {sC[0]}, {f32(c0 * 0.044715)}")
        a(f"s_mov_b32 {sC[1]}, {f32(c0)}")
        vC0 = V.alloc(2)
        a(f"v_mov_b32 {vC0[0]}, {sC[1]}")
        a(f"v_mov_b32 {vC0[1]}, {sC[1]}")
        tb = V.alloc(8, 4)
        for i in range(3):
            u = own[8 * i:8 * i + 8]
            for j in range(4):
                a(f"v_lshlrev_b32 {tb[2 * j]}, 16, {bias[i][j]}")
                a(f"v_and_b32 {tb[2 * j + 1]}, 0xffff0000, {bias[i][j]}")
            if i == 0:
                a.wait(vm=a.vm_done)
            for q in range(4):
                a(f"v_pk_add_f32 {u[2 * q:2 * q + 2]}, {u[2 * q:2 * q + 2]}, {tb[2 * q:2 * q + 2]}")
            a.wait(lg=rtok[i])
            for j in range(3):
                for q in range(4):
                    a(f"v_pk_add_f32 {u[2 * q:2 * q + 2]}, {u[2 * q:2 * q + 2]}, {rd[j][8 * i + 2 * q:8 * i + 2 * q + 2]}")
            for q in range(4):
                a(f"v_pk_mul_f32 {tb[2 * q:2 * q + 2]}, {u[2 * q:2 * q + 2]}, {u[2 * q:2 * q + 2]}")
            for q in range(4):
                a(f"v_pk_fma_f32 {tb[2 * q:2 * q + 2]}, {tb[2 * q:2 * q + 2]}, {sC}, {vC0} op_sel_hi:[1,0,1]")
            for q in range(4):
                a(f"v_pk_mul_f32 {tb[2 * q:2 * q + 2]}, {tb[2 * q:2 * q + 2]}, {u[2 * q:2 * q + 2]}")
            for q in range(8):
                a(f"v_exp_f32 {tb[q]}, {tb[q]}")
            for q in range(4):
                a(f"v_pk_add_f32 {tb[2 * q:2 * q + 2]}, {tb[2 * q:2 * q + 2]}, 1.0 op_sel_hi:[1,0]")
            for q in range(8):
                a(f"v_rcp_f32 {tb[q]}, {tb[q]}")
            for q in range(4):
                a(f"v_pk_mul_f32 {u[2 * q:2 * q + 2]}, {u[2 * q:2 * q + 2]}, {tb[2 * q:2 * q + 2]}")
            for q in range(4):
                a(f"v_cvt_pk_bf16_f32 {u[q]}, {u[2 * q]}, {u[2 * q + 1]}")
            a(f"s_mul_i32 {t[0]}, {self.sWave}, 3")
            a(f"s_add_u32 {t[0]}, {t[0]}, {i}")
            a(f"s_and_b32 {t[1]}, {t[0]}, 1")
            a(f"s_lshl_b32 {t[1]}, {t[1]}, 9")
            a(f"s_lshr_b32 {t[0]}, {t[0]}, 1")
            a(f"s_mul_i32 {t[2]}, {sFt}, 6")
            a(f"s_add_u32 {t[0]}, {t[0]}, {t[2]}")
            a(f"s_lshl_b32 {t[0]}, {t[0]}, 14")
            a(f"s_add_u32 {t[0]}, {t[0]}, {t[1]}")
            a(f"s_lshl_b32 {t[1]}, {sDt}, 10")
            a(f"s_add_u32 {t[0]}, {t[0]}, {t[1]}")
            a(f"buffer_store_dwordx4 {u[0:4]}, {vH}, {self.srdG}, {t[0]} offen sc1")
        gtok = a.vtok()
        for r in rd + vRd + bias + [tb, vC0, vXw]:
            V.release(r)
        self.stamp()
        if cfg.fused:
            for _ in range(3):
                self.s2_park()
                self.s2_dma()
            a.wait(vm=gtok)
            a(f"s_lshl_b32 {t[0]}, {sDt}, 4")
            a(f"s_add_u32 {t[0]}, {t[0]}, {sFt}")
            a(f"s_lshl_b32 {t[0]}, {t[0]}, 2")
            a(f"s_add_u32 {t[0]}, {t[0]}, {self.sWave}")
            a(f"s_lshl_b32 {t[0]}, {t[0]}, 6")
            a(f"s_add_u32 {t[0]}, {t[0]}, {hex(WS_F2)}")
            a(f"v_mov_b32 {own[4]}, {self.sNonce}")
            a(f"v_mov_b32 {own[5]}, 0")
            a("s_mov_b64 exec, 1")
            a(f"buffer_store_dword {own[4]}, {own[5]}, {self.srdWS}, {t[0]} offen sc1")
            a("s_mov_b64 exec, -1")
        V.release(own)
        V.release(vX)

    def q_block(self):
        a, V, A, cfg = self.a, self.V, self.A, self.cfg
        t = self.sT
        sRt, sCg, sXo, sWo = Reg('s', 96), Reg('s', 95), Reg('s', 94), Reg('s', 93)
        sRh, sHp = Reg('s', 92), Reg('s', 91)
        if cfg.fused:
            self.ln_load()
        a(f"s_lshr_b32 {t[0]}, {self.sXcd}, 1")
        a(f"s_lshl_b32 {t[0]}, {t[0]}, 2")
        a(f"s_and_b32 {t[1]}, {self.sQ}, 3")
        a(f"s_add_u32 {sRt}, {t[0]}, {t[1]}")
        a(f"s_and_b32 {t[0]}, {self.sXcd}, 1")
        a(f"s_lshl_b32 {t[0]}, {t[0]}, 2")
        a(f"s_bfe_u32 {t[1]}, {self.sQ}, 0x20002")
        a(f"s_add_u32 {sCg}, {t[0]}, {t[1]}")
        a(f"s_and_b32 {sRh}, {self.sWave}, 1")
        a(f"s_lshr_b32 {sHp}, {self.sWave}, 1")
        self.srd(self.srdW, self.pWqkv, 512 * 3072)
        vDx = [V.alloc() for _ in range(4)]
        vDw = [V.alloc() for _ in range(2)]
        x, y = V.alloc(), V.alloc()
        a(f"v_lshrrev_b32 {x}, 4, {self.vLane}")
        a(f"v_xor_b32 {x}, {x}, {self.vLane}")
        a(f"v_and_b32 {x}, 7, {x}")
        a(f"v_lshlrev_b32 {x}, 4, {x}")
        a(f"v_lshrrev_b32 {y}, 3, {self.vLane}")
        a(f"v_lshl_add_u32 {vDx[0]}, {y}, 10, {x}")
        a(f"v_xor_b32 {vDx[1]}, 64, {vDx[0]}")
        a(f"v_add_u32 {vDx[1]}, {8192 - 1024}, {vDx[1]}")
        a(f"v_add_u32 {vDx[2]}, {2 * (8192 - 1024)}, {vDx[0]}")
        a(f"v_add_u32 {vDx[3]}, {2 * (8192 - 1024)}, {vDx[1]}")
        a(f"v_lshrrev_b32 {x}, 2, {self.vLane}")
        a(f"v_and_b32 {x}, 4, {x}")
        a(f"v_xor_b32 {x}, {x}, {self.vLane}")
        a(f"v_and_b32 {x}, 7, {x}")
        a(f"v_lshlrev_b32 {x}, 4, {x}")
        a(f"v_mul_u32_u24 {vDw[0]}, 3072, {y}")
        a(f"v_add_u32 {vDw[0]}, {vDw[0]}, {x}")
        a(f"v_add_u32 {vDw[1]}, {8 * 3072 - 1024}, {vDw[0]}")
        a(f"s_lshl_b32 {sXo}, {sRt}, 2")
        a(f"s_add_u32 {sXo}, {sXo}, {self.sWave}")
        a(f"s_lshl_b32 {sXo}, {sXo}, 15")
        a(f"s_mul_i32 {sWo}, {self.sWave}, {16 * 3072}")
        a(f"s_lshl_b32 {t[0]}, {sCg}, 7")
        a(f"s_add_u32 {sWo}, {sWo}, {t[0]}")
        sMx, sMw = Reg('s', 90), Reg('s', 89)
        a(f"s_lshl_b32 {sMx}, {self.sWave}, 12")
        a(f"s_lshl_b32 {sMw}, {self.sWave}, 11")
        a(f"s_add_u32 {sMw}, {sMw}, 16384")
        dtok = {}

        def dma(s):
            base = (s % 4) * REGION
            a(f"s_add_u32 m0, {sMx}, {base}")
            for i in range(4):
                a(f"buffer_load_dwordx4 {vDx[i]}, {self.srdX}, {sXo} offen offset:{1024 * i} lds")
            a(f"s_add_u32 {sXo}, {sXo}, 128")
            for seg in range(3):
                a(f"s_add_u32 m0, {sMw}, {base + seg * 8192}")
                a(f"s_add_u32 {t[3]}, {sWo}, {seg * 1024}")
                for o in range(2):
                    a(f"buffer_load_dwordx4 {vDw[o]}, {self.srdW}, {t[3]} offen offset:{1024 * o} lds")
            a(f"s_add_u32 {sWo}, {sWo}, {64 * 3072}")
            dtok[s] = a.vtok()

        for s in range(3):
            dma(s)
        vRx = [V.alloc() for _ in range(4)]
        vRw = V.alloc()
        a(f"v_and_b32 {x}, 31, {self.vLane}")
        a(f"v_lshlrev_b32 {y}, 7, {x}")
        a(f"s_lshl_b32 {t[0]}, {sRh}, 13")
        a(f"v_add_u32 {y}, {t[0]}, {y}")
        a(f"v_bfe_u32 {x}, {self.vLane}, 1, 3")
        a(f"v_lshrrev_b32 {vRw}, 5, {self.vLane}")
        a(f"v_xor_b32 {x}, {x}, {vRw}")
        for kk in range(4):
            a(f"v_xor_b32 {vRx[kk]}, {2 * kk}, {x}")
            a(f"v_lshl_add_u32 {vRx[kk]}, {vRx[kk]}, 4, {y}")
        a(f"v_lshlrev_b32 {vRw}, 10, {vRw}")
        a(f"v_bfe_u32 {x}, {self.vLane}, 2, 2")
        a(f"v_lshl_add_u32 {vRw}, {x}, 7, {vRw}")
        a(f"v_bfe_u32 {x}, {self.vLane}, 4, 1")
        a(f"v_lshl_add_u32 {vRw}, {x}, 5, {vRw}")
        a(f"v_and_b32 {x}, 3, {self.vLane}")
        a(f"v_lshl_add_u32 {vRw}, {x}, 3, {vRw}")
        a(f"v_bfe_u32 {x}, {self.vLane}, 3, 1")
        a(f"v_xor_b32 {x}, {sHp}, {x}")
        a(f"v_lshl_add_u32 {vRw}, {x}, 6, {vRw}")
        a(f"v_add_u32 {vRw}, 16384, {vRw}")
        ones = V.alloc(4)
        for j in range(4):
            a(f"v_mov_b32 {ones[j]}, 0x3f803f80")
        V.release(x)
        V.release(y)
        if cfg.fused:
            self.code_prefetch()
            self.ln_compute(3 * REGION, 4096, 3 * REGION + 16384)
            self.ln_publish()
            self.s2_setup()
        Dq = [V.alloc(16), V.alloc(16)]
        Dk = [V.alloc(16), V.alloc(16)]
        Dv = [V.alloc(16), V.alloc(16)]
        Cq, Ck, Cv = V.alloc(16), V.alloc(16), V.alloc(16)
        fx = [V.alloc(8, 4), V.alloc(8, 4)]
        fw = [V.alloc(12, 4), V.alloc(12, 4)]
        slot_off = {'x': [0] * 4, 'w': 0}

        def reads(s, kk):
            base = (s % 4) * REGION
            b = (4 * s + kk) % 2
            if slot_off['x'][kk] != base:
                d = base - slot_off['x'][kk]
                a(f"v_add_u32 {vRx[kk]}, {d}, {vRx[kk]}" if d > 0 else f"v_subrev_u32 {vRx[kk]}, {-d}, {vRx[kk]}")
                slot_off['x'][kk] = base
            if slot_off['w'] != base:
                d = base - slot_off['w']
                a(f"v_add_u32 {vRw}, {d}, {vRw}" if d > 0 else f"v_subrev_u32 {vRw}, {-d}, {vRw}")
                slot_off['w'] = base
            for rb in range(2):
                a(f"ds_read_b128 {fx[b][4 * rb:4 * rb + 4]}, {vRx[kk]} offset:{4096 * rb}")
            for seg in range(3):
                a(f"ds_read_b64_tr_b16 {fw[b][4 * seg:4 * seg + 2]}, {vRw} offset:{seg * 8192 + kk * 2048}")
                a(f"ds_read_b64_tr_b16 {fw[b][4 * seg + 2:4 * seg + 4]}, {vRw} offset:{seg * 8192 + kk * 2048 + 512}")
            return a.ltok()

        def mfmas(n):
            b = n % 2
            z = lambda r: r if n else '0'
            M = "v_mfma_f32_32x32x16_bf16"
            for rb in range(2):
                xf = fx[b][4 * rb:4 * rb + 4]
                a(f"{M} {Dq[rb]}, {fw[b][0:4]}, {xf}, {z(Dq[rb])}")
                a(f"{M} {Dk[rb]}, {xf}, {fw[b][4:8]}, {z(Dk[rb])}")
                a(f"{M} {Dv[rb]}, {xf}, {fw[b][8:12]}, {z(Dv[rb])}")
            a(f"{M} {Cq}, {fw[b][0:4]}, {ones}, {z(Cq)}")
            a(f"{M} {Ck}, {ones}, {fw[b][4:8]}, {z(Ck)}")
            a(f"{M} {Cv}, {ones}, {fw[b][8:12]}, {z(Cv)}")

        vP = None
        a.wait(vm=dtok[0], lg=a.ltok())
        a("s_barrier")
        self.stamp()
        dma(3)
        rtok = reads(0, 0)
        for s in range(8):
            for kk in range(4):
                n = 4 * s + kk
                if kk < 3:
                    nt = reads(s, kk + 1)
                    a.wait(lg=rtok)
                elif s < 7:
                    a.wait(vm=dtok[s + 1], lg=rtok)
                    a("s_barrier")
                    nt = reads(s + 1, 0)
                    if s + 4 < 8:
                        dma(s + 4)
                else:
                    a.wait(lg=rtok)
                    a("s_barrier")
                    nt = None
                if cfg.fused and s == 7 and kk == 0:
                    vP = V.alloc()
                    a(f"v_and_b32 {vP}, 15, {self.vLane}")
                    a(f"s_lshl_b32 {t[0]}, {sRt}, 4")
                    a(f"v_add_u32 {vP}, {t[0]}, {vP}")
                    a(f"s_lshl_b32 {t[0]}, {sCg}, 5")
                    tmp = V.alloc()
                    a(f"v_mov_b32 {tmp}, {t[0]}")
                    a(f"v_cmp_gt_u32 vcc, 16, {self.vLane}")
                    a(f"v_cndmask_b32 {vP}, {tmp}, {vP}, vcc")
                    V.release(tmp)
                    a(f"v_lshlrev_b32 {vP}, 6, {vP}")
                    a(f"s_mov_b32 {t[4]}, {hex(WS_F1)}")
                    pv, ptk = self.poll_issue(vP, t[4])
                mfmas(n)
                rtok = nt
        for r in fx + fw + vDx + vDw + vRx + [vRw]:
            V.release(r)
        self.stamp()
        if cfg.fused:
            self.poll_check(pv, ptk, vP, t[4])
            V.release(vP)
        self.stamp()
        vS = V.alloc()
        mq = [V.alloc(2), V.alloc(2)]
        mk = [V.alloc(16), V.alloc(16)]
        rk = [V.alloc(16), V.alloc(16)]
        sS = t[5]
        a(f"s_lshl_b32 {sS}, {sRt}, 1")
        a(f"s_add_u32 {sS}, {sS}, {sRh}")
        a(f"s_lshl_b32 {sS}, {sS}, 9")
        a(f"s_add_u32 {sS}, {sS}, {hex(WS_STAT)}")
        x = V.alloc()
        a(f"v_bfe_u32 {vS}, {self.vLane}, 3, 2")
        a(f"v_lshlrev_b32 {vS}, 6, {vS}")
        a(f"v_and_b32 {x}, 7, {self.vLane}")
        a(f"v_lshl_add_u32 {vS}, {x}, 2, {vS}")
        for rb in range(2):
            a(f"buffer_load_dword {mq[rb][0]}, {vS}, {self.srdWS}, {sS} offen offset:{256 * rb} sc1")
            a(f"buffer_load_dword {mq[rb][1]}, {vS}, {self.srdWS}, {sS} offen offset:{256 * rb + 32} sc1")
        qtok = a.vtok()
        a(f"v_lshrrev_b32 {x}, 5, {self.vLane}")
        a(f"v_lshlrev_b32 {x}, 4, {x}")
        ktok = []
        for rb in range(2):
            for q in range(4):
                a(f"buffer_load_dwordx4 {mk[rb][4 * q:4 * q + 4]}, {x}, {self.srdWS}, {sS} offen offset:{256 * rb + 64 * q} sc1")
                a(f"buffer_load_dwordx4 {rk[rb][4 * q:4 * q + 4]}, {x}, {self.srdWS}, {sS} offen offset:{256 * rb + 64 * q + 32} sc1")
            ktok.append(a.vtok())
        if cfg.fused:
            for _ in range(self.S2_SLOTS):
                self.s2_dma()
        sK = self.sP
        tb = V.alloc(16)
        rl = V.alloc(2)
        sE = self.sP2
        a(f"s_mov_b32 {sE[0]}, {f32(1e-6)}")
        a(f"s_mov_b32 {sE[1]}, {f32(LOG2E)}")

        def phi(D):
            for j in range(16):
                a(f"v_exp_f32 {tb[j]}, {tb[j]} clamp")
            for j in range(16):
                a(f"v_max_f32 {D[j]}, {D[j]}, {tb[j]}")
            for j in range(8):
                a(f"v_pk_add_f32 {D[2 * j:2 * j + 2]}, {D[2 * j:2 * j + 2]}, {sE} op_sel_hi:[1,0]")
            for j in range(8):
                a(f"v_cvt_pk_bf16_f32 {D[j]}, {D[2 * j]}, {D[2 * j + 1]}")

        vQ = V.alloc()
        a(f"v_lshlrev_b32 {vQ}, 4, {self.vLane}")
        sQo = t[6]
        a(f"s_lshl_b32 {sQo}, {sCg}, 1")
        a(f"s_add_u32 {sQo}, {sQo}, {sHp}")
        a(f"s_lshl_b32 {sQo}, {sQo}, 17")
        a(f"s_lshl_b32 {t[0]}, {sRt}, 1")
        a(f"s_add_u32 {t[0]}, {t[0]}, {sRh}")
        a(f"s_lshl_b32 {t[0]}, {t[0]}, 11")
        a(f"s_add_u32 {sQo}, {sQo}, {t[0]}")
        a(f"s_add_u32 {sQo}, {sQo}, {hex(WS_PQ)}")
        a(f"s_add_u32 {t[7]}, {sQo}, 0x10000")
        a.wait(vm=qtok)
        for rb in range(2):
            D = Dq[rb]
            a(f"v_mul_f32 {rl[0]}, {sE[1]}, {mq[rb][1]}")
            for j in range(8):
                a(f"v_pk_fma_f32 {D[2 * j:2 * j + 2]}, {Cq[2 * j:2 * j + 2]}, {mq[rb]}, {D[2 * j:2 * j + 2]} op_sel_hi:[1,0,1] neg_lo:[1,0,0] neg_hi:[1,0,0]")
            for j in range(8):
                a(f"v_pk_mul_f32 {tb[2 * j:2 * j + 2]}, {D[2 * j:2 * j + 2]}, {rl[0:2]} op_sel_hi:[1,0]")
            for j in range(8):
                a(f"v_pk_fma_f32 {D[2 * j:2 * j + 2]}, {D[2 * j:2 * j + 2]}, {mq[rb]}, 1.0 op_sel:[0,1,0] op_sel_hi:[1,1,0]")
            phi(D)
            a(f"buffer_store_dwordx4 {D[0:4]}, {vQ}, {self.srdWS}, {sQo} offen offset:{1024 * rb} sc1")
            a(f"buffer_store_dwordx4 {D[4:8]}, {vQ}, {self.srdWS}, {t[7]} offen offset:{1024 * rb} sc1")
        KV, Z = Cq, Dq[0]
        M = "v_mfma_f32_32x32x16_bf16"
        for rb in range(2):
            a.wait(vm=ktok[rb])
            D = Dv[rb]
            for j in range(8):
                a(f"v_pk_fma_f32 {D[2 * j:2 * j + 2]}, {mk[rb][2 * j:2 * j + 2]}, {Cv[0:2]}, {D[2 * j:2 * j + 2]} neg_lo:[1,0,0] neg_hi:[1,0,0]")
            for j in range(8):
                a(f"v_pk_mul_f32 {D[2 * j:2 * j + 2]}, {D[2 * j:2 * j + 2]}, {rk[rb][2 * j:2 * j + 2]}")
            for j in range(8):
                a(f"v_cvt_pk_bf16_f32 {D[j]}, {D[2 * j]}, {D[2 * j + 1]}")
            D = Dk[rb]
            for j in range(8):
                a(f"v_pk_fma_f32 {D[2 * j:2 * j + 2]}, {mk[rb][2 * j:2 * j + 2]}, {Ck[0:2]}, {D[2 * j:2 * j + 2]} neg_lo:[1,0,0] neg_hi:[1,0,0]")
            for j in range(8):
                a(f"v_pk_mul_f32 {D[2 * j:2 * j + 2]}, {D[2 * j:2 * j + 2]}, {rk[rb][2 * j:2 * j + 2]}")
            for j in range(8):
                a(f"v_pk_mul_f32 {tb[2 * j:2 * j + 2]}, {D[2 * j:2 * j + 2]}, {sE} op_sel:[0,1] op_sel_hi:[1,1]")
            for j in range(8):
                a(f"v_pk_add_f32 {D[2 * j:2 * j + 2]}, {D[2 * j:2 * j + 2]}, 1.0 op_sel_hi:[1,0]")
            phi(D)
            for h in range(2):
                z = (lambda r: r) if (rb or h) else (lambda r: '0')
                a(f"{M} {KV}, {Dk[rb][4 * h:4 * h + 4]}, {Dv[rb][4 * h:4 * h + 4]}, {z(KV)}")
                a(f"{M} {Z}, {Dk[rb][4 * h:4 * h + 4]}, {ones}, {z(Z)}")
        vA, vB = V.alloc(), x
        a(f"v_bfe_u32 {vA}, {self.vLane}, 4, 1")
        a(f"v_mul_u32_u24 {vA}, 1088, {vA}")
        a(f"v_lshrrev_b32 {vB}, 5, {self.vLane}")
        a(f"v_mul_u32_u24 {vB}, 272, {vB}")
        a(f"v_add_u32 {vA}, {vA}, {vB}")
        a(f"s_mul_i32 {t[0]}, {sRh}, 4352")
        a(f"s_mul_i32 {t[1]}, {sHp}, 2176")
        a(f"s_add_u32 {t[0]}, {t[0]}, {t[1]}")
        a(f"v_add_u32 {vA}, {t[0]}, {vA}")
        a(f"v_and_b32 {vB}, 15, {self.vLane}")
        a(f"v_lshl_add_u32 {vB}, {vB}, 4, {vA}")
        a(f"v_and_b32 {tb[0]}, 16, {self.vLane}")
        a(f"v_cmp_eq_u32 vcc, 0, {tb[0]}")
        for j in range(8):
            a(f"v_cndmask_b32 {tb[j]}, {KV[8 + j]}, {KV[j]}, vcc")
        for j in range(8):
            a(f"v_cndmask_b32 {tb[8 + j]}, {Z[8 + j]}, {Z[j]}, vcc")
        for j in range(2):
            a(f"ds_write_b128 {vB}, {tb[4 * j:4 * j + 4]} offset:{544 * j}")
            a(f"ds_write_b128 {vA}, {tb[8 + 4 * j:12 + 4 * j]} offset:{544 * j + 256}")
        a(f"v_lshlrev_b32 {vA}, 2, v0")
        a.wait(lg=a.ltok())
        a("s_barrier")
        for j in range(5):
            a(f"ds_read_b32 {tb[j]}, {vA} offset:{1024 * j}")
            a(f"ds_read_b32 {tb[8 + j]}, {vA} offset:{1024 * j + 4352}")
        a(f"s_mul_i32 {t[0]}, {sCg}, 4352")
        a(f"s_add_u32 {t[0]}, {t[0]}, {hex(WS_KVZ)}")
        a(f"s_add_u32 {t[1]}, {t[0]}, 4096")
        a.wait(lg=a.ltok())
        for j in range(5):
            a(f"v_add_f32 {tb[j]}, {tb[j]}, {tb[8 + j]}")
        for j in range(4):
            a(f"buffer_atomic_add_f32 {tb[j]}, {vA}, {self.srdWS}, {t[0]} offen offset:{1024 * j} sc0")
        L = a.label('AT5')
        a(f"s_cmp_lg_u32 {self.sWave}, 0")
        a(f"s_cbranch_scc1 {L}")
        n = a.vm_issued
        a(f"buffer_atomic_add_f32 {tb[4]}, {vA}, {self.srdWS}, {t[1]} offen sc0")
        a.vm_issued = n
        a(f"{L}:")
        atok = a.vtok()
        self.stamp()
        if cfg.fused:
            for _ in range(6):
                self.s2_park()
                self.s2_dma()
            a.wait(vm=atok, force=True)
            a("s_barrier")
            L = a.label('QF')
            a(f"s_cmp_lg_u32 {self.sWave}, 0")
            a(f"s_cbranch_scc1 {L}")
            a(f"s_lshl_b32 {t[0]}, {sCg}, 4")
            a(f"s_add_u32 {t[0]}, {t[0]}, {sRt}")
            a(f"s_lshl_b32 {t[0]}, {t[0]}, 6")
            a(f"s_add_u32 {t[0]}, {t[0]}, {hex(WS_F2 + 512 * 64)}")
            a(f"v_mov_b32 {rl[0]}, {self.sNonce}")
            a(f"v_mov_b32 {rl[1]}, 0")
            a("s_mov_b64 exec, 1")
            n = a.vm_issued
            a(f"buffer_store_dword {rl[0]}, {rl[1]}, {self.srdWS}, {t[0]} offen sc1")
            a.vm_issued = n
            a("s_mov_b64 exec, -1")
            a(f"{L}:")
        else:
            a.wait_all()
        for r in Dq + Dk + Dv + mq + mk + rk + [Cq, Ck, Cv, ones, tb, rl, vS, vQ, vA, x]:
            V.release(r)
        self.vH = V.alloc()
        x = V.alloc()
        a(f"v_lshrrev_b32 {x}, 5, {self.vLane}")
        a(f"v_and_b32 {self.vH}, 31, {self.vLane}")
        a(f"v_lshlrev_b32 {self.vH}, 4, {self.vH}")
        a(f"v_lshl_add_u32 {self.vH}, {x}, 13, {self.vH}")
        V.release(x)
        self.srd(self.srdG, self.pWs, G_BYTES, add=WS_G)

    def s2_block(self):
        a, V, A, cfg = self.a, self.V, self.A, self.cfg
        t = self.sT
        M = "v_mfma_f32_32x32x16_bf16"
        vH = self.vH
        while self.s2_n_park < self.S2_STEPS:
            p = self.s2_dma()
            if self.s2_n_dma == self.S2_STEPS or self.s2_n_dma - self.s2_n_park >= self.S2_SLOTS:
                assert self.s2_park()
        self.stamp()
        vP = V.alloc()
        if cfg.fused:
            a(f"v_and_b32 {vP}, 31, {self.vLane}")
            a(f"v_lshlrev_b32 {vP}, 6, {vP}")
            a(f"s_lshl_b32 {t[0]}, {self.sWave}, 11")
            a(f"s_add_u32 {t[0]}, {t[0]}, {hex(WS_F2 + 512 * 64)}")
            pv, ptk = self.poll_issue(vP, t[0])
            self.poll_check(pv, ptk, vP, t[0])
        self.stamp()
        vK, vQ = V.alloc(), V.alloc()
        a(f"v_and_b32 {vK}, 31, {self.vLane}")
        a(f"v_min_u32 {vK}, 16, {vK}")
        a(f"v_lshlrev_b32 {vK}, 4, {vK}")
        a(f"v_lshrrev_b32 {vQ}, 5, {self.vLane}")
        a(f"v_mul_u32_u24 {vQ}, 272, {vQ}")
        a(f"v_add_u32 {vK}, {vK}, {vQ}")
        a(f"v_lshlrev_b32 {vQ}, 4, {self.vLane}")
        a(f"s_mul_i32 {t[1]}, {self.sWave}, {8 * 1088}")
        a(f"s_add_u32 {t[1]}, {t[1]}, {hex(WS_KVZ)}")
        a(f"s_lshl_b32 {t[2]}, {self.sWave}, 19")
        a(f"s_lshl_b32 {t[3]}, {self.sSt}, 11")
        a(f"s_add_u32 {t[2]}, {t[2]}, {t[3]}")
        a(f"s_add_u32 {t[2]}, {t[2]}, {hex(WS_PQ)}")
        kv = [V.alloc(8, 4) for _ in range(8)]
        pq = [V.alloc(8, 4) for _ in range(8)]
        htok = []
        for h in range(8):
            a(f"buffer_load_dwordx4 {kv[h][0:4]}, {vK}, {self.srdWS}, {t[1]} offen sc1")
            a(f"buffer_load_dwordx4 {kv[h][4:8]}, {vK}, {self.srdWS}, {t[1]} offen offset:544 sc1")
            a(f"buffer_load_dwordx4 {pq[h][0:4]}, {vQ}, {self.srdWS}, {t[2]} offen sc1")
            a(f"buffer_load_dwordx4 {pq[h][4:8]}, {vQ}, {self.srdWS}, {t[2]} offen offset:1024 sc1")
            htok.append(a.vtok())
            if h < 7:
                a(f"s_add_u32 {t[1]}, {t[1]}, 1088")
                a(f"s_add_u32 {t[2]}, {t[2]}, 0x10000")
        V.release(vK)
        if cfg.fused:
            a(f"s_mul_i32 {t[4]}, {self.sWave}, 11")
            a(f"s_mul_i32 {t[4]}, {t[4]}, 21846")
            a(f"s_lshr_b32 {t[4]}, {t[4]}, 16")
            a(f"s_mul_i32 {t[5]}, {self.sWave}, 22")
            a(f"s_add_u32 {t[5]}, {t[5]}, 21")
            a(f"s_min_u32 {t[5]}, {t[5]}, 85")
            a(f"s_mul_i32 {t[5]}, {t[5]}, 10923")
            a(f"s_lshr_b32 {t[5]}, {t[5]}, 16")
            a(f"s_sub_u32 {t[5]}, {t[5]}, {t[4]}")
            a(f"s_lshl_b32 {t[5]}, {t[5]}, 2")
            a(f"s_add_u32 {t[5]}, {t[5]}, 3")
            a(f"v_min_u32 {vP}, {t[5]}, {self.vLane}")
            a(f"v_lshlrev_b32 {vP}, 6, {vP}")
            a(f"s_lshl_b32 {t[5]}, {self.sNt}, 4")
            a(f"s_add_u32 {t[4]}, {t[4]}, {t[5]}")
            a(f"s_lshl_b32 {t[4]}, {t[4]}, 8")
            a(f"s_add_u32 {t[4]}, {t[4]}, {hex(WS_F2)}")
        acc = [[V.alloc(16) for sb in range(2)] for nb in range(2)]
        tmp = [V.alloc(16), V.alloc(16)]
        of = [V.alloc(4), V.alloc(4)]
        sE = self.sP
        a(f"s_mov_b32 {sE[0]}, {f32(1e-6)}")

        def num(h):
            a.wait(vm=htok[h])
            for j in range(4):
                a(f"v_cvt_pk_bf16_f32 {kv[h][j]}, {kv[h][2 * j]}, {kv[h][2 * j + 1]}")
            for sb in range(2):
                a(f"{M} {tmp[sb]}, {kv[h][0:4]}, {pq[h][4 * sb:4 * sb + 4]}, 0")

        def norm(h):
            for sb in range(2):
                a(f"v_add_f32 {tmp[sb][8]}, {sE[0]}, {tmp[sb][8]}")
            for sb in range(2):
                a(f"v_rcp_f32 {tmp[sb][8]}, {tmp[sb][8]}")
            for sb in range(2):
                for j in range(4):
                    a(f"v_pk_mul_f32 {tmp[sb][2 * j:2 * j + 2]}, {tmp[sb][2 * j:2 * j + 2]}, {tmp[sb][8:10]} op_sel_hi:[1,0]")
                for j in range(4):
                    a(f"v_cvt_pk_bf16_f32 {of[sb][j]}, {tmp[sb][2 * j]}, {tmp[sb][2 * j + 1]}")

        def main(h):
            w = self.s2_frag[h]
            a.wait(lg=self.s2_ptok[h])
            for nb in range(2):
                for sb in range(2):
                    c = acc[nb][sb] if h else '0'
                    a(f"{M} {acc[nb][sb]}, {w[4 * nb:4 * nb + 4]}, {of[sb]}, {c}")

        num(0)
        for h in range(8):
            norm(h)
            if h < 7:
                num(h + 1)
            main(h)
            V.release(kv[h])
            V.release(pq[h])
            A.release(self.s2_frag[h])
        for r in tmp + of:
            V.release(r)
        self.stamp()
        if cfg.fused:
            pv, ptk = self.poll_issue(vP, t[4])
            self.poll_check(pv, ptk, vP, t[4])
        V.release(vP)
        self.stamp()
        a(f"s_mul_i32 {t[1]}, {self.sWave}, {22 * 16384}")
        a(f"s_lshl_b32 {t[2]}, {self.sNt}, 10")
        a(f"s_add_u32 {t[1]}, {t[1]}, {t[2]}")
        g = []
        gtok = []
        xres = V.alloc(8, 4)
        vb2 = V.alloc()
        for k in range(22):
            r = V.alloc(8, 4) if V.can(8, 4) and V.nfree() > 20 else A.alloc(8, 4)
            g.append(r)
            a(f"buffer_load_dwordx4 {r[0:4]}, {vH}, {self.srdG}, {t[1]} offen sc1")
            a(f"buffer_load_dwordx4 {r[4:8]}, {vH}, {self.srdG}, {t[1]} offen offset:512 sc1")
            gtok.append(a.vtok())
            if k < 21:
                a(f"s_add_u32 {t[1]}, {t[1]}, 16384")
        vO = V.alloc()
        self.srd(self.srdO, self.pOut, 2048 * 1024)
        self.srd(self.srdB, self.pB2, 2048 * 2)
        a(f"v_and_b32 {vb2}, 31, {self.vLane}")
        a(f"v_lshrrev_b32 {vO}, 5, {self.vLane}")
        a(f"v_lshlrev_b32 {vO}, 4, {vO}")
        a(f"v_lshl_add_u32 {vO}, {vb2}, 10, {vO}")
        a(f"v_lshlrev_b32 {vb2}, 1, {vb2}")
        a(f"s_lshr_b32 {t[2]}, {self.sWave}, 1")
        a(f"s_lshl_b32 {t[3]}, {self.sSt}, 1")
        a(f"s_add_u32 {t[2]}, {t[2]}, {t[3]}")
        a(f"s_lshl_b32 {t[3]}, {t[2]}, 6")
        a(f"s_lshl_b32 {t[2]}, {t[2]}, 15")
        a(f"s_and_b32 {t[4]}, {self.sWave}, 1")
        a(f"s_lshl_b32 {t[5]}, {self.sNt}, 1")
        a(f"s_add_u32 {t[4]}, {t[4]}, {t[5]}")
        a(f"s_lshl_b32 {t[4]}, {t[4]}, 6")
        a(f"s_add_u32 {t[2]}, {t[2]}, {t[4]}")
        a(f"buffer_load_dwordx4 {xres[0:4]}, {vO}, {self.srdX}, {t[2]} offen")
        a(f"buffer_load_dwordx4 {xres[4:8]}, {vO}, {self.srdX}, {t[2]} offen offset:32")
        a(f"buffer_load_ushort {vb2}, {vb2}, {self.srdB}, {t[3]} offen")
        xtok = a.vtok()
        for k in range(22):
            w = self.s2_frag[8 + k]
            a.wait(vm=gtok[k], lg=self.s2_ptok[8 + k])
            for nb in range(2):
                for sb in range(2):
                    a(f"{M} {acc[nb][sb]}, {g[k][4 * nb:4 * nb + 4]}, {w[4 * sb:4 * sb + 4]}, {acc[nb][sb]}")
        for k in range(22):
            (V if g[k].cls == 'v' else A).release(g[k])
            A.release(self.s2_frag[8 + k])
        self.stamp()
        blk = lambda o: acc[o & 1][o >> 1]
        vXw = V.alloc()
        sReg = t[6]
        a(f"s_mul_i32 {sReg}, {self.sWave}, {REGION}")
        a(f"v_add_u32 {vXw}, {sReg}, {vQ}")
        own = V.alloc(16)
        Lw = [a.label('YW') for _ in range(4)]
        Lj = a.label('YJ')
        if cfg.fused:
            a("s_barrier")
        for w in range(4):
            a(f"{Lw[w]}:")
            if w < 3:
                a(f"s_cmp_lg_u32 {self.sWave}, {w}")
                a(f"s_cbranch_scc1 {Lw[w + 1]}")
            n0 = a.lg_issued
            for o in range(4):
                if o == w:
                    continue
                d = (o - w - 1) % 4
                for q in range(4):
                    a(f"ds_write_b128 {vXw}, {blk(o)[4 * q:4 * q + 4]} offset:{(d * 4 + q) * 1024}")
            for q in range(8):
                a(f"v_pk_add_f32 {own[2 * q:2 * q + 2]}, {blk(w)[2 * q:2 * q + 2]}, 0")
            if w < 3:
                a.lg_issued = n0
                a(f"s_branch {Lj}")
        a(f"{Lj}:")
        for nb in range(2):
            for sb in range(2):
                V.release(acc[nb][sb])
        vRd = [V.alloc() for _ in range(3)]
        for j in range(3):
            a(f"s_add_u32 {t[0]}, {self.sWave}, {1 + j}")
            a(f"s_and_b32 {t[0]}, {t[0]}, 3")
            a(f"s_mul_i32 {t[0]}, {t[0]}, {REGION}")
            a(f"s_add_u32 {t[0]}, {t[0]}, {((2 - j) % 4) * 4096}")
            a(f"v_add_u32 {vRd[j]}, {t[0]}, {vQ}")
        a.wait(lg=a.ltok())
        a("s_barrier")
        rd = [V.alloc(16) for _ in range(3)]
        rtok = []
        for j in range(3):
            for q in range(4):
                a(f"ds_read_b128 {rd[j][4 * q:4 * q + 4]}, {vRd[j]} offset:{q * 1024}")
            rtok.append(a.ltok())
        a.wait(vm=xtok)
        a(f"v_lshlrev_b32 {vb2}, 16, {vb2}")
        b2p = V.alloc(2)
        a(f"v_mov_b32 {b2p[0]}, {vb2}")
        for q in range(8):
            a(f"v_pk_add_f32 {own[2 * q:2 * q + 2]}, {own[2 * q:2 * q + 2]}, {b2p} op_sel_hi:[1,0]")
        for j in range(3):
            a.wait(lg=rtok[j])
            for q in range(8):
                a(f"v_pk_add_f32 {own[2 * q:2 * q + 2]}, {own[2 * q:2 * q + 2]}, {rd[j][2 * q:2 * q + 2]}")
        for p in range(2):
            for j in range(4):
                a(f"v_permlane32_swap_b32 {own[8 * p + j]}, {own[8 * p + 4 + j]}")
        xs = rd[0]
        for p in range(2):
            for j in range(4):
                a(f"v_lshlrev_b32 {xs[8 * p + 2 * j]}, 16, {xres[4 * p + j]}")
                a(f"v_and_b32 {xs[8 * p + 2 * j + 1]}, 0xffff0000, {xres[4 * p + j]}")
        for p in range(2):
            for q in range(4):
                a(f"v_pk_add_f32 {own[8 * p + 2 * q:8 * p + 2 * q + 2]}, {own[8 * p + 2 * q:8 * p + 2 * q + 2]}, {xs[8 * p + 2 * q:8 * p + 2 * q + 2]}")
            for q in range(4):
                a(f"v_cvt_pk_bf16_f32 {own[8 * p + q]}, {own[8 * p + 2 * q]}, {own[8 * p + 2 * q + 1]}")
            a(f"buffer_store_dwordx4 {own[8 * p:8 * p + 4]}, {vO}, {self.srdO}, {t[2]} offen offset:{32 * p}")
        self.stamp()

    def code_prefetch(self):
        pass

    def kernel_head(self, name):
        self.a(f".globl {name}\n.p2align 8\n.type {name},@function\n{name}:")

    def build(self):
        a, cfg = self.a, self.cfg
        kernels = []
        if cfg.fused:
            name = NAME + '_kernel'
            kernels.append(name)
            self.kernel_head(name)
            self.prologue('END')
            self.stamp()
            a(f"s_cmp_ge_u32 {self.sQ}, 16")
            a("s_cbranch_scc1 QROLE")
            import copy
            st = (copy.deepcopy(self.V), copy.deepcopy(self.A), self.nstamp, a.vm_issued, a.vm_done, a.lg_issued, a.lg_done)
            self.p_block()
            self.s2_block()
            self.flush_stamps()
            a("s_endpgm")
            a("QROLE:")
            self.V, self.A, self.nstamp, a.vm_issued, a.vm_done, a.lg_issued, a.lg_done = st
            self.q_block()
            self.s2_block()
            self.flush_stamps()
            a("END:")
            a("s_endpgm")
        else:
            kernels = ['ln_kernel', 'st1_kernel', 'st2_kernel']
            self.kernel_head(kernels[0])
            self.nstamp = 0
            self.prologue('END0')
            self.stamp()
            self.ln_load()
            self.ln_compute(36864, REGION, 39936)
            self.ln_publish()
            self.flush_stamps(0)
            a("END0:")
            a("s_endpgm")
            a.reset_counters()
            self.kernel_head(kernels[1])
            self.nstamp = 0
            self.prologue('END1')
            self.stamp()
            a(f"s_cmp_ge_u32 {self.sQ}, 16")
            a("s_cbranch_scc1 QROLE")
            import copy
            st = (copy.deepcopy(self.V), copy.deepcopy(self.A), self.nstamp, a.vm_issued, a.vm_done, a.lg_issued, a.lg_done)
            self.p_block()
            self.flush_stamps(1)
            a("s_endpgm")
            a("QROLE:")
            self.V, self.A, self.nstamp, a.vm_issued, a.vm_done, a.lg_issued, a.lg_done = st
            self.q_block()
            self.flush_stamps(1)
            a("END1:")
            a("s_endpgm")
            a.reset_counters()
            self.kernel_head(kernels[2])
            self.nstamp = 0
            self.prologue('END2')
            self.stamp()
            self.s2_setup()
            self.vH = self.V.alloc()
            x = self.V.alloc()
            a(f"v_lshrrev_b32 {x}, 5, {self.vLane}")
            a(f"v_and_b32 {self.vH}, 31, {self.vLane}")
            a(f"v_lshlrev_b32 {self.vH}, 4, {self.vH}")
            a(f"v_lshl_add_u32 {self.vH}, {x}, 13, {self.vH}")
            self.V.release(x)
            self.srd(self.srdG, self.pWs, G_BYTES, add=WS_G)
            self.s2_block()
            self.flush_stamps(2)
            a("END2:")
            a("s_endpgm")
        body = a.finish()
        head = ["; parallel_sum__linear_attn_block__mixer_token_mlp__prompt: out = x + linattn(LN x) + mixer(LN x)",
                "; generated by work/gen.py (hand-written schedule, see the comments there)"]
        if cfg.fused:
            head.append("; @launch grid=(256,1,1) block=(256,1,1) lds=163840")
        else:
            for k in kernels:
                head.append(f"; @launch kernel={k} grid=(256,1,1) block=(256,1,1) lds=163840")
        head.append('.amdgcn_target "amdgcn-amd-amdhsa--gfx950"')
        head.append('.text')
        tail = ['.section .rodata,"a"']
        for k in kernels:
            tail.append(f""".p2align 6
.amdhsa_kernel {k}
  .amdhsa_next_free_vgpr 512
  .amdhsa_next_free_sgpr 102
  .amdhsa_accum_offset 256
  .amdhsa_group_segment_fixed_size 0
  .amdhsa_kernarg_size 88
  .amdhsa_user_sgpr_count 2
  .amdhsa_user_sgpr_kernarg_segment_ptr 1
  .amdhsa_system_sgpr_workgroup_id_x 1
.end_amdhsa_kernel""")
        return "\n".join(head) + "\n" + body + "\n" + "\n".join(tail) + "\n"


if __name__ == '__main__':
    cfg = Cfg()
    out = sys.argv[1]
    for kv in sys.argv[2:]:
        k, v = kv.split('=')
        setattr(cfg, k, int(v))
    g = Gen(cfg)
    txt = g.build()
    open(out, 'w').write(txt)
    print(f"wrote {out}: {len(txt)} bytes, {len(g.a.ins)} lines, {g.a.nops} pad states")
```
